```python
import torch

def _softmax(x, axis=-1):
    return torch.softmax(x, dim=axis)
def _gelu(x):
    return torch.nn.functional.gelu(x, approximate="tanh")
def _silu(x):
    return torch.nn.functional.silu(x)
def _sigmoid(x):
    return torch.sigmoid(x)
def _layernorm(x, axis=-1, eps=1e-5):
    m = x.mean(dim=axis, keepdim=True)
    v = x.var(dim=axis, keepdim=True, unbiased=False)
    return (x - m) / torch.sqrt(v + eps)
def _scatter_add(tgt, idx, src, axis=0):
    return tgt.clone().index_add_(axis, idx, src)
def _segment_sum(src, seg, n):
    out = torch.zeros((n,) + src.shape[1:], dtype=src.dtype)
    return out.index_add_(0, seg, src)
def _pad(x, pw):
    flat = tuple(v for pair in reversed(pw) for v in pair)
    return torch.nn.functional.pad(x, flat)

kernel_name = 'recurrent_scan__linear_attn_block__glu_gated_swiglu__prompt'

def setup_inputs():

    _w = (lambda a: (lambda t: t.to(torch.bfloat16) if t.is_floating_point() else t)(torch.as_tensor(a)))
    def _A_setup():
        B, S, D = 1, 2048, 640
        return {
            "x": _w((lambda *s: torch.randn(*s, dtype=torch.bfloat16) * 0.05)(B, S, D)),
            "wqkv": _w((lambda *s: torch.randn(*s, dtype=torch.bfloat16) * 0.8)(D, 3 * D)),
            "wo": _w((lambda *s: torch.randn(*s, dtype=torch.bfloat16) * 0.8)(D, D)),
        }
    _A_in = _A_setup()

    def _B_setup():
        B, S, D, F = 1, 2048, 640, 1728
        return {
            "x": _w((lambda *s: torch.randn(*s, dtype=torch.bfloat16) * 0.05)(B, S, D)),
            "w1": _w((lambda *s: torch.randn(*s, dtype=torch.bfloat16) * 0.2)(D, F) * (2.0 / D) ** 0.5),
            "w3": _w((lambda *s: torch.randn(*s, dtype=torch.bfloat16) * 0.2)(D, F) * (2.0 / D) ** 0.5),
            "w2": _w((lambda *s: torch.randn(*s, dtype=torch.bfloat16) * 0.2)(F, D) * (2.0 / F) ** 0.5),
        }
    _B_in = _B_setup()

    return {
        "A_x": _A_in["x"],
        "A_wqkv": _A_in["wqkv"],
        "A_wo": _A_in["wo"],
        "B_x": _B_in["x"],
        "B_w1": _B_in["w1"],
        "B_w3": _B_in["w3"],
        "B_w2": _B_in["w2"],
    }

def reference(A_x, A_wqkv, A_wo, B_x, B_w1, B_w3, B_w2):
    def _A_ref(x, wqkv, wo):
        B, S, D = x.shape
        H = 32; Dh = D // H
        qkv = (lambda x, *d: x.permute(*d))((x @ wqkv).reshape(B, S, 3, H, Dh), 2, 0, 3, 1, 4)
        q, k, v = qkv[0], qkv[1], qkv[2]
        phi = lambda t: torch.where(t > 0, t + 1, torch.exp(t)) + 1e-6
        pq, pk = phi(q), phi(k)
        kv = torch.einsum("bhsd,bhse->bhde", pk, v)
        z = torch.einsum("bhsd->bhd", pk)
        num = torch.einsum("bhqd,bhde->bhqe", pq, kv)
        den = torch.einsum("bhqd,bhd->bhq", pq, z)[..., None] + 1e-6
        o = num / den
        return (lambda x, *d: x.permute(*d))(o, 0, 2, 1, 3).reshape(B, S, D) @ wo

    def _B_ref(x, w1, w3, w2):
        gate = torch.einsum("bsd,df->bsf", x, w1)
        up = torch.einsum("bsd,df->bsf", x, w3)
        h = _silu(gate) * up
        out = torch.einsum("bsf,fd->bsd", h, w2)
        return out

    x = A_x
    xn = _layernorm(x, axis=-1)
    s = _A_ref(xn, A_wqkv, A_wo)
    g = _silu(_B_ref(xn, B_w1, B_w3, B_w2))
    return x + s * g
```

```python
import re

def expand(op):
    op = op.strip()
    m = re.fullmatch(r'-?\|?(?:abs\()?([vas])\[(\d+):(\d+)\]\)?\|?', op)
    if m: return [f"{m.group(1)}{i}" for i in range(int(m.group(2)), int(m.group(3)) + 1)]
    m = re.fullmatch(r'-?\|?(?:abs\()?([vas])(\d+)\)?\|?', op)
    if m: return [f"{m.group(1)}{m.group(2)}"]
    if op in ('vcc', 'exec', 'm0', 'scc'): return [op]
    if op in ('vcc_lo', 'vcc_hi'): return ['vcc']
    if op in ('exec_lo', 'exec_hi'): return ['exec']
    return []

TRANS = ('v_exp_f32', 'v_log_f32', 'v_rcp_f32', 'v_rsq_f32', 'v_sqrt_f32', 'v_sin_f32', 'v_cos_f32')

class Ins:
    __slots__ = ('text', 'mn', 'kind', 'rd', 'wr', 'passes', 'srcc', 'tok', 'wvm', 'wlg', 'cost', 'store_data', 'label')
    def __init__(self, text):
        self.text = text; self.tok = None; self.wvm = None; self.wlg = None
        self.passes = 0; self.srcc = []; self.store_data = []; self.label = False
        t = text.split(';')[0].strip()
        if t.endswith(':') or t.startswith('.'):
            self.mn = t; self.kind = 'label'; self.rd = set(); self.wr = set(); self.cost = 0; self.label = True; return
        parts = t.split(None, 1)
        mn = parts[0]; self.mn = mn
        rest = parts[1] if len(parts) > 1 else ''
        ops = [o.strip() for o in re.split(r',(?![^\[]*\])', rest)] if rest else []
        mods = ''
        if ops:
            lp = ops[-1].split(None, 1)
            ops[-1] = lp[0]; mods = lp[1] if len(lp) > 1 else ''
        E = [expand(o) for o in ops]
        rd, wr = set(), set()
        def R(*idx):
            for i in idx:
                if i < len(E): rd.update(E[i])
        def W(*idx):
            for i in idx:
                if i < len(E): wr.update(E[i])
        allr = range(len(E))
        cost = 4
        if mn.startswith('v_mfma'):
            k = 'mfma'; W(0); R(1, 2, 3); self.srcc = E[3] if len(E) > 3 else []
            self.passes = 8 if '32x32' in mn else 4; cost = 8
        elif mn.startswith('v_cmp'):
            k = 'valu'; W(0); R(*list(allr)[1:]); rd.add('exec')
        elif mn in ('v_readfirstlane_b32', 'v_readlane_b32'):
            k = 'valu'; W(0); R(*list(allr)[1:])
        elif mn.startswith('v_permlane') and 'swap' in mn:
            k = 'valu'; W(0, 1); R(0, 1)
        elif mn.startswith('v_'):
            k = 'trans' if mn.replace('_e32', '').replace('_e64', '') in TRANS else 'valu'
            if k == 'trans': cost = 8
            W(0)
            if mn.startswith(('v_add_co', 'v_sub_co', 'v_addc_co', 'v_subb_co')): W(1); R(*list(allr)[2:])
            else: R(*list(allr)[1:])
            if mn.startswith(('v_fmac', 'v_dot2c', 'v_writelane')): R(0)
            if mn.startswith('v_cndmask') and len(ops) == 3: rd.add('vcc')
        elif mn.startswith('ds_read') or mn.startswith('ds_bpermute') or mn.startswith('ds_swizzle'):
            k = 'lds'; W(0); R(*list(allr)[1:])
        elif mn.startswith('ds_'):
            k = 'lds'; R(*allr)
        elif mn.startswith('buffer_') or mn.startswith('global_'):
            k = 'vmem'; cost = 8
            ml = mods.split()
            if 'lds' in ml or '_lds_' in mn:
                R(*allr); rd.add('m0')
            elif 'load' in mn:
                W(0); R(*list(allr)[1:])
            else:
                R(*allr)
                if 'store' in mn and ('x4' in mn or 'x3' in mn):
                    self.store_data = E[0] if mn.startswith('buffer_') else E[1]
                if 'atomic' in mn and 'sc0' in ml: W(0)
        elif mn.startswith('s_load') or mn in ('s_memtime', 's_memrealtime'):
            k = 'smem'; W(0); R(*list(allr)[1:])
        elif mn in ('s_waitcnt', 's_barrier', 's_nop', 's_sleep', 's_setprio', 's_endpgm', 's_branch') or mn.startswith('s_cbranch'):
            k = 'ctrl'; cost = 4
            if mn == 's_nop': cost = 4 * (int(ops[0], 0) + 1) if False else 4
        elif mn.startswith('s_cmp') or mn.startswith('s_bitcmp'):
            k = 'salu'; R(*allr); wr.add('scc')
        elif mn.startswith('s_'):
            k = 'salu'; W(0); R(*list(allr)[1:])
            if 'saveexec' in mn: wr.add('exec'); rd.add('exec')
        else:
            raise ValueError("unknown instr " + text)
        self.kind = k; self.rd = rd; self.wr = wr; self.cost = cost
    def states(self):
        if self.label: return 0
        if self.mn == 's_nop': return int(self.text.split()[1], 0) + 1
        return 1

class Wait(Ins):
    def __init__(self, vm=None, lg=None):
        self.text = None; self.mn = 'WAIT'; self.kind = 'ctrl'; self.rd = set(); self.wr = set()
        self.passes = 0; self.srcc = []; self.store_data = []; self.label = False; self.cost = 2
        self.tok = None; self.wvm = vm; self.wlg = lg

def I(text):
    return Ins(text)

def L(text):
    return [Ins(t.strip()) for t in text.strip().split('\n') if t.strip()]

def isvalu(i): return i.kind in ('valu', 'trans')

def need_states(p, c):
    n = 0
    if isvalu(p):
        pv = {r for r in p.wr if r[0] in 'va' and r not in ('vcc',)}
        ps = {r for r in p.wr if r[0] == 's' or r == 'vcc'}
        if c.kind == 'mfma' and pv & c.rd: n = max(n, 2)
        if p.kind == 'trans' and c.kind == 'valu' and pv & c.rd: n = max(n, 1)
        if p.kind == 'trans' and c.kind in ('vmem', 'lds', 'mfma') and pv & c.rd: n = max(n, 2 if c.kind == 'mfma' else 1)
        if isvalu(c) and ps & c.rd: n = max(n, 4 if c.mn.startswith(('v_readlane', 'v_writelane')) else 2)
        if c.kind == 'vmem' and ps & c.rd: n = max(n, 5)
        if c.kind == 'salu' and ps & c.rd: n = max(n, 1)
        if c.mn.startswith(('v_readfirstlane', 'v_readlane')) and pv & c.rd: n = max(n, 1)
        if (c.mn.startswith('v_permlane') or 'dpp' in c.mn or 'row_' in (c.text or '') or 'quad_perm' in (c.text or '')) and pv & c.rd: n = max(n, 2)
        if 'exec' in p.wr: n = max(n, 5)
    if p.kind == 'mfma':
        big = 12 if p.passes == 8 else 8
        D = p.wr
        if c.kind == 'mfma':
            cc = set(c.srcc)
            ab = c.rd - cc if cc else c.rd
            if D & ab: n = max(n, big)
            if cc & D and (cc != D or c.passes != p.passes): n = max(n, big - 2)
            if (not (cc & D)) and (c.wr & D) and False: n = max(n, big)
        elif c.kind in ('valu', 'trans', 'vmem', 'lds'):
            if D & (c.rd | c.wr): n = max(n, big)
        if isvalu(c) and set(p.srcc) & c.wr: n = max(n, 7 if p.passes == 8 else 3)
    if p.kind == 'salu' and 'm0' in p.wr and c.kind == 'vmem' and 'm0' in c.rd: n = max(n, 1)
    if p.store_data:
        sd = set(p.store_data)
        if sd & c.wr: n = max(n, 2 if isvalu(c) else 1)
    return n

def resolve(prog):
    vm = 0; lg = 0; vm_done = 0; lg_done = 0
    out = []
    for ins in prog:
        if isinstance(ins, Wait):
            parts = []
            if ins.wvm is not None:
                idx = vm if ins.wvm == 'all' else ins.wvm.tok[1]
                assert ins.wvm == 'all' or ins.wvm.tok[0] == 'vm', ins.wvm.text
                if idx > vm_done:
                    n = min(vm - idx, 63); parts.append(f"vmcnt({n})"); vm_done = max(vm_done, vm - n)
            if ins.wlg is not None:
                idx = lg if ins.wlg == 'all' else ins.wlg.tok[1]
                assert ins.wlg == 'all' or ins.wlg.tok[0] == 'lg', ins.wlg.text
                if idx > lg_done:
                    n = min(lg - idx, 15); parts.append(f"lgkmcnt({n})"); lg_done = max(lg_done, lg - n)
            if parts: out.append(Ins("s_waitcnt " + " ".join(parts)))
            continue
        if ins.kind == 'vmem': vm += 1; ins.tok = ('vm', vm)
        elif ins.kind == 'lds': lg += 1; ins.tok = ('lg', lg)
        elif ins.kind == 'smem': lg += 1; ins.tok = ('lg', lg)
        elif ins.mn == 's_waitcnt':
            m = re.search(r'vmcnt\((\d+)\)', ins.text)
            if m: vm_done = max(vm_done, vm - int(m.group(1)))
            m = re.search(r'lgkmcnt\((\d+)\)', ins.text)
            if m: lg_done = max(lg_done, lg - int(m.group(1)))
        out.append(ins)
    res = []
    for c in out:
        if not c.label:
            dist = 0; need = 0
            for p in reversed(res):
                if dist >= 20: break
                if p.label: continue
                n = need_states(p, c)
                if n > dist: need = max(need, n - dist)
                dist += p.states()
            while need > 0:
                k = min(need, 16); res.append(Ins(f"s_nop {k-1}")); need -= k
        res.append(c)
    return res

def text_of(prog):
    return "\n".join(("" if i.label else "    ") + i.text for i in prog)
```

```python
import sys
from glib import *

NAME = "recurrent_scan__linear_attn_block__glu_gated_swiglu__prompt"
HF_OFF, WF_OFF, KVS_OFF, ST_OFF = 0x0, 0xA00000, 0xE00000, 0xF00000
WS_REC = 0x1000000
HUGE = 0x40000000
KVC = 25600
KVB = 40960 + 25600
SJ = 36864
SLOT = 5120
XR = 96
WFR = 160
OPT = dict(stamp=False, R=4, barpos=1, budget=18, codepf=True, bud_kvq=24, bud_kvgu=40)
KVGU_TR = [6, 7, 8, 9, 17, 18, 19, 22]

class Bundle:
    def __init__(self, ins, cost=None, sync=False):
        self.ins = ins if isinstance(ins, list) else [ins]
        self.cost = sum(i.cost for i in self.ins) if cost is None else cost
        self.sync = sync

def B1(lines):
    return [Bundle(i) for i in L(lines)] if isinstance(lines, str) else [Bundle(i) for i in lines]

def srd(d, lo, hi, n):
    return L(f"s_mov_b32 s{d}, s{lo}\ns_mov_b32 s{d+1}, s{hi}\ns_mov_b32 s{d+2}, {n}\ns_mov_b32 s{d+3}, 0x20000")

def k1_common():
    P = []
    P += L("s_cmp_ge_u32 s2, 256\ns_cbranch_scc1 K1_END")
    if OPT['stamp']: P += L("s_memrealtime s[90:91]\ns_memtime s[92:93]")
    P += L("""s_load_dwordx4 s[68:71], s[0:1], 0
s_load_dwordx2 s[72:73], s[0:1], 16
s_load_dwordx4 s[76:79], s[0:1], 32
s_load_dwordx2 s[74:75], s[0:1], 48
s_load_dwordx4 s[80:83], s[0:1], 64
v_lshrrev_b32 v1, 6, v0
s_and_b32 s4, s2, 7
s_lshr_b32 s5, s2, 3
v_readfirstlane_b32 s3, v1
v_and_b32 v1, 63, v0""")
    R = OPT['R']
    if R == 4:
        P += L("""s_and_b32 s7, s4, 3
s_lshl_b32 s7, s7, 2
s_lshr_b32 s4, s4, 2
s_lshl_b32 s4, s4, 3
s_lshr_b32 s6, s5, 2
s_and_b32 s5, s5, 3
s_add_u32 s7, s7, s5
s_add_u32 s5, s4, s6
s_mov_b32 s4, s7""")
    elif R == 8:
        P += L("""s_and_b32 s7, s4, 1
s_lshl_b32 s7, s7, 3
s_lshr_b32 s4, s4, 1
s_lshl_b32 s4, s4, 2
s_lshr_b32 s6, s5, 3
s_and_b32 s5, s5, 7
s_add_u32 s7, s7, s5
s_add_u32 s5, s4, s6
s_mov_b32 s4, s7""")
    elif R == 2:
        P += L("""s_lshl_b32 s4, s4, 1
s_and_b32 s7, s5, 1
s_add_u32 s4, s4, s7
s_lshr_b32 s5, s5, 1""")
    P += L("s_mul_i32 s6, s3, 40960\ns_waitcnt lgkmcnt(0)")
    P += srd(8, 68, 69, 2621440)
    P += srd(12, 76, 77, 2211840)
    P += srd(16, 78, 79, 2211840)
    P += srd(20, 70, 71, 2457600)
    P += srd(24, 82, 83, WS_REC)
    P += srd(28, 80, 81, 256)
    P += L("s_cmp_lt_u32 s5, 4\ns_cbranch_scc1 K1_KVQ\ns_cmp_lt_u32 s5, 8\ns_cbranch_scc1 K1_KVGU\ns_branch K1_GU3")
    return P

def x_dma():
    P = L("""v_lshrrev_b32 v40, 3, v1
v_mul_u32_u24 v41, 1280, v40
v_lshrrev_b32 v42, 4, v1
v_and_b32 v43, 7, v1
v_xor_b32 v43, v43, v42
v_lshl_add_u32 v30, v43, 4, v41
v_xor_b32 v31, 64, v30
v_add_u32 v31, 10240, v31
s_mul_i32 s43, s4, 163840
s_add_u32 s43, s43, s6
s_add_u32 s44, s43, 20480""")
    last = []
    for c in range(10):
        for rg in range(4):
            P.append(I(f"s_add_u32 m0, s6, {c*4096 + rg*1024 - c*128}"))
            ld = I(f"buffer_load_dwordx4 v{30+(rg&1)}, s[8:11], s{43+(rg>>1)} offen offset:{c*128} lds")
            P.append(ld)
        last.append(ld)
    return P, last

def setup_tr_gu(base):
    if isinstance(base, int): base = list(range(base, base + 8))
    P = L("""v_lshrrev_b32 v40, 4, v1
v_and_b32 v41, 1, v40
v_lshrrev_b32 v40, 1, v40
v_bfe_u32 v42, v1, 2, 2
v_and_b32 v43, 3, v1
v_lshl_add_u32 v44, v40, 3, v42
v_lshlrev_b32 v44, 7, v44
v_lshl_add_u32 v44, v41, 11, v44
v_and_b32 v45, 1, v43
v_lshl_add_u32 v44, v45, 3, v44
v_and_b32 v45, 2, v42
v_lshl_add_u32 v45, v41, 2, v45
v_lshrrev_b32 v43, 1, v43""")
    for t in range(4):
        P += L(f"""v_xor_b32 v46, {2*t}, v45
v_add_u32 v46, v46, v43
v_lshl_add_u32 v{base[2*t]}, v46, 4, v44
v_add_u32 v{base[2*t+1]}, 81920, v{base[2*t]}""")
    return P

def setup_tr_5(base):
    return L(f"""v_lshrrev_b32 v40, 4, v1
v_and_b32 v41, 1, v40
v_lshrrev_b32 v40, 1, v40
v_bfe_u32 v42, v1, 2, 2
v_and_b32 v43, 3, v1
v_lshl_add_u32 v44, v40, 3, v42
v_mul_u32_u24 v44, 320, v44
v_mul_u32_u24 v45, 40, v41
v_lshl_add_u32 v45, v43, 3, v45
v_add_u32 v{base}, v44, v45
v_add_u32 v{base+1}, 81920, v{base}
v_lshl_add_u32 v45, v41, 2, v43
v_mul_u32_u24 v45, 40, v45
v_add3_u32 v{base+2}, v44, v45, 32
v_add_u32 v{base+3}, 81920, v{base+2}""")

def setup_dma_gu(base):
    return L(f"""v_lshrrev_b32 v40, 3, v1
v_mul_u32_u24 v41, 3456, v40
v_and_b32 v42, 7, v1
v_and_b32 v40, 2, v40
v_xor_b32 v42, v42, v40
v_lshl_add_u32 v{base}, v42, 4, v41
v_xor_b32 v{base+1}, 64, v{base}""")

def setup_dma_5(base, kv):
    P = []
    for p in range(5):
        P += L(f"""v_add_u32 v40, {64*p}, v1
v_mul_u32_u24 v41, 3277, v40
v_lshrrev_b32 v41, 16, v41
v_mul_u32_u24 v42, 20, v41
v_sub_u32 v42, v40, v42
v_mul_u32_u24 v41, 3840, v41
v_lshl_add_u32 v{base+p}, v42, 4, v41""")
        if kv:
            P += L(f"""v_cmp_lt_u32 vcc, 9, v42
v_mov_b32 v43, 1280
v_mov_b32 v44, 2400
v_cndmask_b32 v43, v43, v44, vcc
v_add_u32 v{base+p}, v{base+p}, v43""")
    return P

class Grp:
    def __init__(self, typ, acc, trb, dmab, sbase):
        self.typ = typ; self.T = 4 if typ == 'GU' else 5
        self.acc = acc; self.trb = trb; self.dmab = dmab; self.sbase = sbase

def dma_bundles(groups, S):
    g, s = divmod(S, 10)
    if g >= len(groups): return []
    G = groups[g]
    out = []
    slot = (S % 5) * SLOT
    if G.typ == 'GU':
        for p in range(4):
            pre = []
            if p == 0: pre = L(f"s_add_u32 s43, s{G.sbase}, {s*221184}\ns_add_u32 s44, s{G.sbase}, {s*221184+27648}")
            sr = 12 + 4 * (p >> 1)
            out.append(Bundle(pre + L(f"s_add_u32 m0, s6, {slot + p*1024}\ns_nop 0\nbuffer_load_dwordx4 v{G.dmab+(p>>1)}, s[{sr}:{sr+3}], s{43+(p&1)} offen lds"), cost=14))
    else:
        for p in range(5):
            pre = []
            if p == 0: pre = L(f"s_add_u32 s43, s{G.sbase}, {s*245760}")
            out.append(Bundle(pre + L(f"s_add_u32 m0, s6, {slot + p*1024}\ns_nop 0\nbuffer_load_dwordx4 v{G.dmab+p}, s[20:23], s43 offen lds"), cost=14))
    return out

def tr_reads(groups, kk, t):
    g, k = divmod(kk, 40)
    if g >= len(groups): return []
    G = groups[g]
    S, q = divmod(kk, 4)
    off = (q & 1) * 40960 + (S % 5) * SLOT
    a = WFR + (kk & 1) * 20 + t * 4
    if G.typ == 'GU':
        v = (G.trb[2 * t + (q >> 1)] if isinstance(G.trb, list) else G.trb + 2 * t + (q >> 1)); d = 512
    else:
        d = 1280
        if t < 4: v = G.trb + (q >> 1); off += 80 * t
        else: v = G.trb + 2 + (q >> 1)
    return [I(f"ds_read_b64_tr_b16 a[{a}:{a+1}], v{v} offset:{off}"), I(f"ds_read_b64_tr_b16 a[{a+2}:{a+3}], v{v} offset:{off+d}")]

def norm_ins(k):
    o = []
    tm = [(34, 35), (36, 37), (38, 39), (88, 89)]
    for j in range(4):
        x = XR + 4 * k + j; a, b = tm[j]
        o.append(I(f"v_lshlrev_b32 v{a}, 16, v{x}")); o.append(I(f"v_and_b32 v{b}, s52, v{x}"))
    for j in range(4):
        a, b = tm[j]
        o.append(I(f"v_fma_f32 v{a}, v{a}, v32, v33")); o.append(I(f"v_fma_f32 v{b}, v{b}, v32, v33"))
    for j in range(4):
        x = XR + 4 * k + j; a, b = tm[j]
        o.append(I(f"v_cvt_pk_bf16_f32 v{x}, v{a}, v{b}"))
    return o

def gu_epilogue(acc, sreg):
    o = []
    for t in range(4):
        H = 56
        for i0 in range(0, 8, 4):
            tm = [(40 + 3 * j, 41 + 3 * j, 42 + 3 * j) for j in range(4)]
            for j in range(4):
                g, u, e = tm[j]
                o.append(I(f"v_accvgpr_read_b32 v{g}, a{acc+16*t+i0+j}"))
                o.append(I(f"v_accvgpr_read_b32 v{u}, a{acc+16*t+8+i0+j}"))
            for j in range(4):
                g, u, e = tm[j]; o.append(I(f"v_mul_f32 v{e}, s50, v{g}"))
            for j in range(4):
                g, u, e = tm[j]; o.append(I(f"v_exp_f32 v{e}, v{e}")); o.append(I(f"v_mul_f32 v{g}, v{g}, v{u}"))
            for j in range(4):
                g, u, e = tm[j]; o.append(I(f"v_add_f32 v{e}, 1.0, v{e}"))
            for j in range(4):
                g, u, e = tm[j]; o.append(I(f"v_rcp_f32 v{e}, v{e}"))
            for j in range(4):
                g, u, e = tm[j]; o.append(I(f"v_mul_f32 v{H+i0+j}, v{g}, v{e}"))
        Q = 64 + 4 * (t & 1)
        for j in range(4):
            o.append(I(f"v_cvt_pk_bf16_f32 v{Q+j}, v{H+2*j}, v{H+2*j+1}"))
        o.append(I(f"buffer_store_dwordx4 v[{Q}:{Q+3}], v{28+(t>>1)}, s[24:27], s{sreg} offen offset:{512*(t&1)}"))
    return o

def phi_pack(acc, dst, raw_dst=None):
    o = []
    for i0 in range(0, 16, 4):
        for j in range(4): o.append(I(f"v_accvgpr_read_b32 v{88+j}, a{acc+i0+j}"))
        if raw_dst is not None:
            o.append(I(f"v_cvt_pk_bf16_f32 v{raw_dst+i0//2}, v88, v89")); o.append(I(f"v_cvt_pk_bf16_f32 v{raw_dst+i0//2+1}, v90, v91"))
        for j in range(4): o.append(I(f"v_mul_f32 v{92+j}, s51, v{88+j}"))
        for j in range(4):
            o.append(I(f"v_exp_f32_e64 v{92+j}, v{92+j} clamp")); o.append(I(f"v_max_f32 v{88+j}, s53, v{88+j}"))
        for j in range(4): o.append(I(f"v_add_f32 v{88+j}, v{88+j}, v{92+j}"))
        o.append(I(f"v_cvt_pk_bf16_f32 v{dst+i0//2}, v88, v89")); o.append(I(f"v_cvt_pk_bf16_f32 v{dst+i0//2+1}, v90, v91"))
    return o

def raw_pack(acc, dst):
    o = []
    for i0 in range(0, 16, 4):
        for j in range(4): o.append(I(f"v_accvgpr_read_b32 v{88+j}, a{acc+i0+j}"))
        o.append(I(f"v_cvt_pk_bf16_f32 v{dst+i0//2}, v88, v89")); o.append(I(f"v_cvt_pk_bf16_f32 v{dst+i0//2+1}, v90, v91"))
    return o

def poll(lbl, voff, target, tmpv, ld=None):
    o = []
    if ld is None:
        ld = I(f"buffer_load_dword v{tmpv}, v{voff}, s[28:31], 0 offen sc1"); o.append(ld)
    o.append(Wait(vm=ld))
    o += L(f"""{lbl}_chk:
s_nop 0
v_readfirstlane_b32 s7, v{tmpv}
s_nop 1
s_cmp_ge_u32 s7, {target}
s_cbranch_scc1 {lbl}_ok
s_sleep 2""")
    sp = I(f"s_nop 0"); sp.text = f"buffer_load_dword v{tmpv}, v{voff}, s[28:31], 0 offen sc1\n    s_waitcnt vmcnt(0)\n    s_branch {lbl}_chk"
    sp.mn = 'RAW'
    o.append(sp)
    o.append(I(f"{lbl}_ok:"))
    return o

def kv_epilogue(acc, tag):
    F = []
    K0, K1, V0, V1, RK, RP = 40, 48, 56, 64, 72, 80
    F += B1(phi_pack(acc + 0, K0)); F += B1(phi_pack(acc + 16, K1))
    F += B1(raw_pack(acc + 32, V0)); F += B1(raw_pack(acc + 48, V1))
    F += B1(phi_pack(acc + 64, RK, RP))
    F += B1("v_mov_b32 v88, 0x3f803f80")
    for j in range(8): F += B1(f"v_cndmask_b32 v{RP+j}, v{RP+j}, v88, s[54:55]")
    pairs = [(V0, K0), (V1, K1), (RP, K0), (RP, K1), (RK, V0), (RK, V1), (RP, RK)]
    D = [acc + 0, acc + 16, acc + 32, acc + 48, acc + 64, 200, 216]
    for (a, b), d in zip(pairs, D):
        F.append(Bundle(I(f"v_mfma_f32_32x32x16_bf16 a[{d}:{d+15}], v[{a}:{a+3}], v[{b}:{b+3}], 0"), cost=32))
        F.append(Bundle(I(f"v_mfma_f32_32x32x16_bf16 a[{d}:{d+15}], v[{a+4}:{a+7}], v[{b+4}:{b+7}], a[{d}:{d+15}]"), cost=32))
    F += B1(f"""v_lshrrev_b32 v88, 5, v1
v_and_b32 v89, 15, v1
v_lshlrev_b32 v90, 2, v89
v_add_u32 v90, {KVC}, v90
v_mad_u32_u24 v40, v88, s84, v90
v_mad_u32_u24 v41, v88, s85, v90
v_bfe_u32 v91, v1, 4, 1
v_mad_u32_u24 v42, v91, s85, v90
v_mul_u32_u24 v91, 80, v89
v_add_u32 v91, {KVC+64}, v91
v_mad_u32_u24 v43, v88, s85, v91
v_lshrrev_b32 v91, 2, v89
v_mul_u32_u24 v91, 1680, v91
v_and_b32 v92, 3, v1
v_lshl_add_u32 v91, v92, 2, v91
v_add_u32 v44, {KVC+64}, v91""")
    va, vb, vz, vd, vc = 40, 41, 42, 43, 44
    M = {1: 54, 2: 56, 3: 58, 4: 60, 5: 62, 6: 64, 7: 66}
    def grp(mask, items):
        ins = [I(f"s_mov_b64 exec, s[{M[mask]}:{M[mask]+1}]")]
        ins += [I(f"ds_add_f32 v{v}, a{r} offset:{off}") for (v, r, off) in items]
        ins.append(I("s_mov_b64 exec, -1"))
        F.append(Bundle(ins, cost=8 + 6 * len(items)))
    for p in range(2):
        d = D[p]; o = 3360 * p
        for j in range(4):
            grp(1 if j < 2 else 2, [(va, d + 4 * j + i, o + ((21 if j >= 2 else 0) + 8 * (j & 1) + i) * 80) for i in range(4)])
    for p in range(2):
        d = D[2 + p]; o = 3360 * p
        grp(3, [(vz, d, o + 1600)])
        grp(4, [(vb, d + 8 + 4 * p + i, o + (16 + i) * 80) for i in range(4)])
    for p in range(2):
        d = D[4 + p]; o = 3360 * p
        grp(4, [(vd, d + 4 * p + i, o + 4 * i) for i in range(4)])
    d = D[6]
    grp(5, [(vc, d, 1600)])
    grp(6, [(vc, d + 8 + i, (16 + i) * 80) for i in range(4)])
    grp(7, [(vc, d + 12 + i, (16 + i) * 80) for i in range(4)])
    zl = I("buffer_load_dword v45, v27, s[28:31], 0 offen sc1")
    F.append(Bundle(zl))
    F.append(Bundle([Wait(lg='all')], sync=True))
    F += B1(f"v_lshlrev_b32 v46, 2, v0\nv_add_u32 v47, {KVC}, v46")
    rds = []
    for i in range(7):
        r = I(f"ds_read_b32 v{48+i}, v47 offset:{1024*i}"); rds.append(r); F.append(Bundle(r))
    F.append(Bundle(poll(f"K1_{tag}_Z", 27, 16, 45, zl), cost=40))
    F += B1("v_add_u32 v55, 4096, v46")
    at = None
    for i in range(7):
        at = I(f"buffer_atomic_add_f32 v{48+i}, v{46 if i < 4 else 55}, s[32:35], 0 offen offset:{1024*(i&3)}")
        F.append(Bundle([Wait(lg=rds[i]), at], cost=16))
    F.append(Bundle([], cost=600))
    F.append(Bundle([Wait(vm=at)], sync=True))
    F += B1("v_mov_b32 v45, 1")
    F.append(Bundle(I("buffer_atomic_add v45, v26, s[28:31], 0 offen sc1")))
    return F

def side_setup(job):
    P = L(f"""s_sub_u32 s86, s5, 8
s_lshl_b32 s86, s86, 4
s_add_u32 s86, s86, s4
s_lshl_b32 s86, s86, 2
s_add_u32 s86, s86, s3
s_add_u32 s86, s86, {512*job}
s_mul_i32 s87, s86, 6554
s_lshr_b32 s87, s87, 16
s_mul_i32 s88, s87, 10
s_sub_u32 s88, s86, s88
s_cmp_lt_u32 s87, 54
s_cselect_b32 s36, s74, s72
s_cselect_b32 s37, s75, s73
s_mov_b32 s38, 819200
s_cselect_b32 s38, 2211840, s38
s_mov_b32 s39, 0x20000""")
    P += L("""s_sub_u32 s89, s87, 54
s_mul_i32 s94, s89, 52
s_lshr_b32 s94, s94, 8
s_mul_i32 s95, s94, 5
s_sub_u32 s95, s89, s95
s_mul_i32 s94, s94, 160
s_mul_i32 s96, s95, 40
s_add_u32 s96, s96, s94
s_add_u32 s94, s94, 16
s_cmp_eq_u32 s95, 4
s_cselect_b32 s96, s94, s96
s_cselect_b32 s97, 40, 8
s_cselect_b32 s98, 80, 20
s_cselect_b32 s99, 120, 28
s_cselect_b32 s95, 1, 0
s_lshl_b32 s94, s87, 5
s_cmp_lt_u32 s87, 54
s_cselect_b32 s96, s94, s96
s_cselect_b32 s97, 8, s97
s_cselect_b32 s98, 16, s98
s_cselect_b32 s99, 24, s99
s_cselect_b32 s95, 0, s95
s_mul_i32 s76, s96, 1280
s_lshl_b32 s94, s88, 7
s_add_u32 s76, s76, s94
s_cmp_lt_u32 s86, 740
s_cselect_b32 s76, s76, """ + str(HUGE) + """
s_mul_i32 s97, s97, 1280
s_mul_i32 s98, s98, 1280
s_mul_i32 s99, s99, 1280
s_add_u32 s77, s76, s97
s_add_u32 s78, s76, s98
s_add_u32 s79, s76, s99""")
    P += L("""v_lshrrev_b32 v72, 3, v1
v_lshrrev_b32 v73, 5, v1
v_mul_u32_u24 v73, 20, v73
v_and_b32 v74, 3, v72
v_add_u32 v73, v73, v74
s_cmp_eq_u32 s95, 1
s_cselect_b64 vcc, -1, 0
v_cndmask_b32 v72, v72, v73, vcc
v_mul_u32_u24 v72, 1280, v72
v_and_b32 v73, 7, v1
v_lshl_add_u32 v25, v73, 4, v72""")
    for j in range(4):
        P += L(f"""s_lshl_b32 s94, s88, 2
s_add_u32 s94, s94, {j}
s_mul_i32 s96, s94, 52
s_lshr_b32 s96, s96, 8
s_mul_i32 s97, s96, 5
s_sub_u32 s94, s94, s97
s_mul_i32 s96, s96, 74
s_add_u32 s96, s96, s87
s_mul_i32 s96, s96, 5
s_add_u32 s96, s96, s94
s_lshl_b32 s96, s96, 10
s_add_u32 s96, s96, {WF_OFF}
s_cmp_lt_u32 s86, 740
s_cselect_b32 s{68+j}, s96, {HUGE}""")
    return P

def side_job():
    F = []
    lds = []
    for p in range(4):
        ld = I(f"buffer_load_dwordx4 v25, s[36:39], s{76+p} offen lds")
        F.append(Bundle(L(f"s_add_u32 m0, s6, {SJ + p*1024}\ns_nop 0") + [ld], cost=14)); lds.append(ld)
    F += B1(f"""v_lshrrev_b32 v72, 4, v1
v_lshrrev_b32 v73, 1, v72
v_and_b32 v72, 1, v72
v_lshlrev_b32 v73, 4, v73
v_lshl_add_u32 v73, v72, 2, v73
v_bfe_u32 v72, v1, 2, 2
v_add_u32 v73, v73, v72
v_lshlrev_b32 v73, 7, v73
v_and_b32 v72, 3, v1
v_lshl_add_u32 v73, v72, 3, v73
v_add_u32 v24, s6, v73
v_lshlrev_b32 v23, 4, v1""")
    F.append(Bundle([], cost=500))
    F.append(Bundle([Wait(vm=lds[-1])], cost=8))
    rds = []
    for j in range(4):
        a = I(f"ds_read_b64_tr_b16 v[{72+4*j}:{73+4*j}], v24 offset:{SJ + 32*j}")
        b = I(f"ds_read_b64_tr_b16 v[{74+4*j}:{75+4*j}], v24 offset:{SJ + 32*j + 1024}")
        F.append(Bundle([a, b])); rds.append(b)
    F.append(Bundle([], cost=60))
    for j in range(4):
        F.append(Bundle([Wait(lg=rds[j]), I(f"buffer_store_dwordx4 v[{72+4*j}:{75+4*j}], v23, s[24:27], s{68+j} offen")], cost=16))
    return F

def q_tail(acc, tag):
    P = []
    cl = I("buffer_load_dword v2, v22, s[28:31], 0 offen sc1"); P.append(cl)
    for t in range(5): P += phi_pack(acc + 16 * t, 40 + 8 * t)
    P += poll(f"K1_{tag}_C", 22, 32, 2, cl)
    P += L(f"""s_mul_i32 s7, s5, 13440
s_add_u32 s7, s7, {KVS_OFF}
s_add_u32 s32, s82, s7
s_addc_u32 s33, s83, 0
s_mov_b32 s34, 13440
s_mov_b32 s35, 0x20000
v_lshlrev_b32 v3, 4, v0
v_add_u32 v4, 4096, v3
v_add_u32 v5, 8192, v3
v_add_u32 v6, 12288, v3""")
    lds = []
    for i in range(4):
        ld = I(f"buffer_load_dwordx4 v[{224+4*i}:{227+4*i}], v{3+i}, s[32:35], 0 offen sc1"); P.append(ld); lds.append(ld)
    P += L(f"""v_lshlrev_b32 v3, 3, v0
v_add_u32 v3, {KVB}, v3
v_and_b32 v4, 31, v1
v_min_u32 v5, 24, v4
v_subrev_u32 v5, 4, v5
v_cmp_gt_u32 vcc, 20, v4
v_cndmask_b32 v4, v5, v4, vcc
v_mul_u32_u24 v4, 40, v4
v_add_u32 v5, {KVB+32}, v4
v_lshrrev_b32 v6, 5, v1
v_lshl_add_u32 v4, v6, 3, v4
v_add_u32 v4, {KVB}, v4""")
    for i in range(4):
        P.append(Wait(vm=lds[i]))
        P += L(f"""v_cvt_pk_bf16_f32 v{240+2*i}, v{224+4*i}, v{225+4*i}
v_cvt_pk_bf16_f32 v{241+2*i}, v{226+4*i}, v{227+4*i}
ds_write_b64 v3, v[{240+2*i}:{241+2*i}] offset:{2048*i}""")
    for b in (8, 14):
        for j in (0, 1, 4, 5): P.append(I(f"v_mov_b32 v{b+j}, 0"))
    P.append(Wait(lg='all')); P.append(I("s_barrier"))
    rd = []
    for h in range(8):
        P.append(I(f"ds_read_b64 a[{4*h}:{4*h+1}], v4 offset:{840*h}"))
        P.append(I(f"ds_read_b64 a[{4*h+2}:{4*h+3}], v4 offset:{840*h+16}"))
        r = I(f"ds_read_b64 v[{224+2*h}:{225+2*h}], v5 offset:{840*h}"); P.append(r); rd.append(r)
    for h in range(8):
        a = h & 3; b = 8 + 6 * (h & 1)
        P.append(Wait(lg=rd[h]))
        for j in range(2):
            if a & 1: P.append(I(f"v_cndmask_b32 v{b+2+j}, v{224+2*h+j}, 0, s[58:59]"))
            else: P.append(I(f"v_cndmask_b32 v{b+2+j}, 0, v{224+2*h+j}, s[58:59]"))
        d = XR + 16 * h
        P.append(I(f"v_mfma_f32_32x32x16_bf16 v[{d}:{d+15}], a[{4*h}:{4*h+3}], v[{40+4*h}:{43+4*h}], 0"))
        f2 = b + 2 if (a >> 1) == 0 else b
        ru = 72 + 4 * (h >> 2)
        P.append(I(f"v_mfma_f32_32x32x16_bf16 v[{d}:{d+15}], v[{f2}:{f2+3}], v[{ru}:{ru+3}], v[{d}:{d+15}]"))
    P += L(f"s_mul_i32 s7, s5, 20480\ns_add_u32 s7, s7, s45\ns_add_u32 s7, s7, {54*4096}")
    for h in range(8):
        d = XR + 16 * h
        P += L(f"v_add_f32 v{d+12}, s53, v{d+12}\nv_rcp_f32 v{d+12}, v{d+12}")
    for h in range(8):
        d = XR + 16 * h
        for j in range(12): P.append(I(f"v_mul_f32 v{d+j}, v{d+j}, v{d+12}"))
        Q = 40 + 4 * h
        for j in range(4): P.append(I(f"v_cvt_pk_bf16_f32 v{Q+j}, v{d+2*j}, v{d+2*j+1}"))
        for j in range(2): P.append(I(f"v_cvt_pk_bf16_f32 v{224+2*h+j}, v{d+8+2*j}, v{d+9+2*j}"))
        if h % 2 == 0: P.append(I(f"s_add_u32 s43, s7, {(h>>1)*4096}"))
        P.append(I(f"buffer_store_dwordx4 v[{Q}:{Q+3}], v28, s[24:27], s43 offen offset:{512*(h&1)}"))
    P.append(I(f"s_add_u32 s43, s7, {4*4096}"))
    for p in range(2):
        Q = 72 + 4 * p
        for jj in range(2):
            hA = 4 * p + 2 * jj
            for j in range(2):
                P.append(I(f"v_cndmask_b32 v{Q+2*jj+j}, v{224+2*(hA+1)+j}, v{224+2*hA+j}, s[58:59]"))
        P.append(I(f"buffer_store_dwordx4 v[{Q}:{Q+3}], v28, s[24:27], s43 offen offset:{512*p}"))
    return P

def Grp_prev_typ(groups, gi):
    return groups[gi - 1].typ if gi > 0 else None

def scc_safe(ins):
    out = []; cur = []
    for i in ins:
        if i.mn.startswith('s_cselect') or (i.mn.startswith('v_cndmask')) or (cur and i.mn.startswith('s_mov')):
            cur.append(i); continue
        if cur: out.append(Bundle(cur, cost=2 * len(cur))); cur = []
        if i.mn.startswith('s_cmp'): cur = [i]
        else: out.append(Bundle(i, cost=2 if i.kind == 'salu' else 4))
    if cur: out.append(Bundle(cur, cost=2 * len(cur)))
    return out

def stamp(idx):
    if not OPT['stamp']: return []
    return L(f"s_memtime s[94:95]\ns_waitcnt lgkmcnt(0)\ns_sub_u32 s94, s94, s92\nv_writelane_b32 v21, s94, {idx}")

def k1_path(tag):
    types = {'KVQ': ['KV', 'Q'], 'KVGU': ['KV', 'GU'], 'GU3': ['GU', 'GU', 'GU']}[tag]
    P = [I(f"K1_{tag}:")]
    if OPT['stamp']: P += L("v_mov_b32 v21, 0")
    if OPT['codepf']:
        P += L(f"""s_getpc_b64 s[86:87]
s_and_b32 s7, s4, 3
s_lshl_b32 s7, s7, 13
s_add_u32 s86, s86, s7
s_addc_u32 s87, s87, 0
s_cmp_lg_u32 s3, 0
s_cbranch_scc1 K1_{tag}_nopf
v_lshlrev_b32 v40, 7, v1""")
        pf = I("s_nop 0"); pf.text = "global_load_dword v95, v40, s[86:87]"; pf.mn = 'RAW'
        P.append(pf)
        P.append(I(f"K1_{tag}_nopf:"))
    xi, xlast = x_dma()
    P += xi
    kv = types[0] == 'KV'
    groups = []
    if tag == 'GU3':
        groups = [Grp('GU', 0, 2, 10, 40), Grp('GU', 80, 2, 10, 41), Grp('GU', 0, 2, 10, 42)]
        P += setup_tr_gu(2) + setup_dma_gu(10)
        P += L(f"""s_sub_u32 s7, s5, 8
s_mul_i32 s7, s7, 3
s_add_u32 s7, s7, 4
s_mul_i32 s43, s3, 55296
s_lshl_b32 s44, s7, 7
s_add_u32 s40, s43, s44
s_add_u32 s41, s40, 128
s_add_u32 s42, s40, 256
s_lshl_b32 s46, s7, 13
s_cmp_eq_u32 s5, 15
s_cselect_b32 s42, {HUGE}, s42""")
    else:
        P += setup_tr_5(2) + setup_dma_5(10, True)
        P += L("s_mul_i32 s40, s3, 61440\ns_mul_i32 s7, s5, 160\ns_add_u32 s40, s40, s7")
        if tag == 'KVQ':
            groups = [Grp('KV', 0, 2, 10, 40), Grp('Q', 80, 2, 15, 41)]
            P += setup_dma_5(15, False)
            P += L("s_mul_i32 s41, s3, 61440\ns_mul_i32 s7, s5, 320\ns_add_u32 s41, s41, s7")
        else:
            groups = [Grp('KV', 0, 2, 10, 40), Grp('GU', 80, KVGU_TR, 15, 41)]
            P += setup_dma_gu(15)
            P += L("""s_sub_u32 s7, s5, 4
s_mul_i32 s43, s3, 55296
s_lshl_b32 s44, s7, 7
s_add_u32 s41, s43, s44
s_lshl_b32 s47, s7, 13""")
        P += L(f"""s_mul_i32 s7, s5, 6720
s_add_u32 s7, s7, {KVS_OFF}
s_add_u32 s32, s82, s7
s_addc_u32 s33, s83, 0
s_mov_b32 s34, 6720
s_mov_b32 s35, 0x20000
s_mul_i32 s7, s4, 420
v_lshlrev_b32 v40, 2, v0
v_mov_b32 v41, {HUGE}
v_cmp_gt_u32 vcc, 105, v0
v_cndmask_b32 v40, v41, v40, vcc
v_mov_b32 v42, 0
buffer_store_dword v42, v40, s[32:35], s7 offen sc0 sc1
s_lshl_b32 s7, s5, 2
v_mov_b32 v27, s7
v_cmp_eq_u32 vcc, 0, v0
v_cndmask_b32 v20, v41, v27, vcc
s_lshr_b32 s7, s5, 1
s_lshl_b32 s7, s7, 2
s_add_u32 s7, s7, 128
v_mov_b32 v26, s7
v_cndmask_b32 v26, v41, v26, vcc
s_lshl_b32 s7, s5, 2
s_add_u32 s7, s7, 128
v_mov_b32 v22, s7""")
        masks = [(0xFFFF, 0xFFFF), (0xFFFF0000, 0xFFFF0000), (0xFFFFFFFF, 0), (0xFFFF, 0xFFFF0000), (0xFFFF, 0), (0xF, 0xF0), (0xF00, 0xF000)]
        for i, (lo, hi) in enumerate(masks):
            P += L(f"s_mov_b32 s{54+2*i}, {lo:#x}\ns_mov_b32 s{55+2*i}, {hi:#x}")
        P += L("s_mov_b32 s84, 320\ns_mov_b32 s85, 1680")
    P += L(f"""s_lshl_b32 s7, s4, 1
s_lshr_b32 s43, s3, 1
s_add_u32 s7, s7, s43
s_mul_i32 s45, s7, {74*4096}
s_and_b32 s43, s3, 1
s_lshl_b32 s43, s43, 11
s_add_u32 s45, s45, s43
v_bfe_u32 v40, v1, 4, 1
v_lshlrev_b32 v40, 10, v40
v_lshrrev_b32 v41, 5, v1
v_lshl_add_u32 v40, v41, 8, v40
v_and_b32 v41, 15, v1
v_lshl_add_u32 v28, v41, 4, v40
v_add_u32 v29, 4096, v28
s_mov_b32 s50, 0xbfb8aa3b
s_mov_b32 s51, 0x3fb8aa3b
s_mov_b32 s52, 0xffff0000
s_mov_b32 s53, 0x358637bd
s_mov_b32 s49, 0x3f803f80""")
    if tag == 'GU3':
        P += L(f"""s_add_u32 s46, s46, s45
s_add_u32 s47, s46, 8192
s_add_u32 s48, s46, 16384
s_cmp_eq_u32 s5, 15
s_cselect_b32 s48, {HUGE}, s48""")
    elif tag == 'KVGU':
        P += L("s_add_u32 s47, s47, s45")
    if tag == 'GU3': P += side_setup(0)
    if tag == 'KVGU': P += setup_tr_gu(KVGU_TR)
    P += L("""v_and_b32 v40, 31, v1
v_lshrrev_b32 v41, 5, v1
v_bfe_u32 v42, v1, 1, 3
v_lshlrev_b32 v43, 7, v40
v_add_u32 v43, s6, v43""")
    for q in range(4):
        P += L(f"v_add_u32 v44, {2*q}, v41\nv_xor_b32 v44, v44, v42\nv_lshl_add_u32 v{34+q}, v44, 4, v43")
    for j in range(8): P.append(I(f"v_mov_b32 v{48+j}, 0"))
    nextS = 0
    dl = {}
    def issue_dma(S):
        bs = dma_bundles(groups, S)
        o = []
        for b in bs: o += b.ins
        if bs: dl[S] = bs[-1].ins[-1]
        return o
    prev = None
    for c in range(11):
        cur = None
        if c < 10:
            P.append(Wait(vm=xlast[c]))
            cur = []
            for q in range(4):
                k = 4 * c + q
                r = I(f"ds_read_b128 v[{XR+4*k}:{XR+4*k+3}], v{34+q} offset:{4096*c}"); P.append(r); cur.append(r)
        if prev is not None:
            pc = c - 1
            P.append(Wait(lg=prev[-1]))
            while nextS < 5 and ((nextS + 1) * SLOT - 1) // 4096 <= pc:
                P += issue_dma(nextS); nextS += 1
            for j in range(16):
                x = XR + 16 * pc + j
                P.append(I(f"v_dot2_f32_bf16 v{48+(j&3)}, v{x}, s49, v{48+(j&3)}"))
                P.append(I(f"v_dot2_f32_bf16 v{52+(j&3)}, v{x}, v{x}, v{52+(j&3)}"))
        prev = cur
    P += stamp(0)
    P += L("""s_nop 2
v_add_f32 v48, v48, v49
v_add_f32 v50, v50, v51
v_add_f32 v52, v52, v53
v_add_f32 v54, v54, v55
v_add_f32 v48, v48, v50
v_add_f32 v52, v52, v54
v_mov_b32 v49, v48
v_mov_b32 v53, v52
v_permlane32_swap_b32 v48, v49
v_permlane32_swap_b32 v52, v53
v_add_f32 v48, v48, v49
v_add_f32 v52, v52, v53
v_mul_f32 v48, 0x3acccccd, v48
v_mul_f32 v52, 0x3acccccd, v52
v_fma_f32 v52, -v48, v48, v52
v_max_f32 v52, 0, v52
v_cvt_pk_bf16_f32 v50, v48, v52
v_and_b32 v52, s52, v50
v_lshlrev_b32 v48, 16, v50
v_add_f32 v52, 0x3727c5ac, v52
v_cvt_pk_bf16_f32 v52, v52, v52
v_and_b32 v52, s52, v52
v_sqrt_f32 v52, v52
v_cvt_pk_bf16_f32 v52, v52, v52
v_and_b32 v52, s52, v52
v_rcp_f32 v32, v52
v_mul_f32 v33, v48, v32
v_sub_f32 v33, 0, v33""")
    P += norm_ins(0)
    P.append(Wait(vm=dl[0])); P.append(I("s_barrier"))
    rdtok = {}
    for t in range(groups[0].T):
        rr = tr_reads(groups, 0, t); P += rr; rdtok[(0, t)] = rr[-1]
    P += stamp(1)
    nG = len(groups)
    dmaq = []
    for gi, G in enumerate(groups):
        F = []
        if gi == 0:
            if kv:
                F.append(Bundle([], sync=True))
                F += B1(f"v_lshlrev_b32 v56, 2, v0\nv_add_u32 v56, {KVC}, v56\nv_mov_b32 v57, 0\nv_mov_b32 v58, 1")
                for i in range(7): F += B1(f"ds_write_b32 v56, v57 offset:{1024*i}")
                F += B1("buffer_atomic_add v58, v20, s[28:31], 0 offen sc1")
        else:
            Pv = groups[gi - 1]
            if Pv.typ == 'GU': F += B1(gu_epilogue(Pv.acc, 46 + gi - 1))
            else: F += kv_epilogue(Pv.acc, tag)
            if tag == 'GU3':
                sj = side_job()
                if gi == 1:
                    F = sj[:4] + F + sj[4:] + scc_safe(side_setup(1))
                else: F = sj[:4] + F + sj[4:]
        gbud = OPT['budget'] if Grp_prev_typ(groups, gi) != 'KV' else (OPT['bud_kvq'] if tag == 'KVQ' else OPT['bud_kvgu'])
        debt = 0
        for k in range(40):
            kk = 40 * gi + k
            S, q = divmod(kk, 4)
            ng, _ = divmod(kk + 1, 40)
            Tn = groups[ng].T if ng < nG else 0
            pend = []
            forced = norm_ins(k + 1) if (gi == 0 and k < 39) else []
            nf = len(forced)
            for t in range(G.T):
                a = WFR + (kk & 1) * 20 + t * 4; acc = G.acc + 16 * t; x = XR + 4 * k
                P.append(Wait(lg=rdtok[(kk, t)]))
                c = f"a[{acc}:{acc+15}]" if k else "0"
                if G.typ == 'KV': P.append(I(f"v_mfma_f32_32x32x16_bf16 a[{acc}:{acc+15}], v[{x}:{x+3}], a[{a}:{a+3}], {c}"))
                else: P.append(I(f"v_mfma_f32_32x32x16_bf16 a[{acc}:{acc+15}], a[{a}:{a+3}], v[{x}:{x+3}], {c}"))
                budget = gbud + 8
                tiles = [t] if t < G.T - 1 else list(range(t, max(Tn, t + 1)))
                for tt in tiles:
                    if tt < Tn:
                        rr = tr_reads(groups, kk + 1, tt); pend += rr; rdtok[(kk + 1, tt)] = rr[-1]
                if q == 3 and t == OPT['barpos'] and S + 1 < 10 * nG:
                    if F and F[0].sync:
                        P += F.pop(0).ins
                    P.append(Wait(vm=dl[S + 1], lg='all')); P.append(I("s_barrier"))
                    bs = dma_bundles(groups, S + 5)
                    if bs: dl[S + 5] = bs[-1].ins[-1]
                    dmaq += bs
                if not (q == 3 and t < OPT['barpos'] and S + 1 < 10 * nG):
                    P += pend; budget -= 4 * len(pend); pend = []
                if forced:
                    n = (nf + G.T - 1) // G.T if t < G.T - 1 else len(forced)
                    P += forced[:n]; budget -= 4 * min(n, len(forced)); forced = forced[n:]
                if dmaq and (t == 1 or (t == 3 and len(dmaq) > 3 - ((q + 1) & 3))):
                    b = dmaq.pop(0); P += b.ins; budget -= b.cost
                budget -= debt; debt = 0
                while F and not F[0].sync and budget > 0:
                    b = F[0]
                    if not b.ins and b.cost > budget:
                        b.cost -= 32; break
                    F.pop(0); P += b.ins; budget -= b.cost
                if budget < 0: debt = min(-budget, 32)
        if F: print(f"  [{tag}] group {gi}: {len(F)} filler bundles left over", file=sys.stderr)
        for b in F:
            P += b.ins
            if b.sync: P.append(I("s_barrier"))
        P += stamp(2 + gi)
    Lg = groups[-1]
    if Lg.typ == 'GU': P += gu_epilogue(Lg.acc, 46 + nG - 1)
    else: P += q_tail(Lg.acc, tag)
    P += stamp(6)
    if OPT['stamp']:
        P += L(f"""s_memrealtime s[94:95]
s_waitcnt lgkmcnt(0)
v_writelane_b32 v21, s90, 8
v_writelane_b32 v21, s94, 9
v_writelane_b32 v21, s5, 10
s_lshl_b32 s7, s2, 2
s_add_u32 s7, s7, s3
s_lshl_b32 s7, s7, 6
s_add_u32 s7, s7, {ST_OFF}
v_lshlrev_b32 v40, 2, v1
v_mov_b32 v41, {HUGE}
v_cmp_gt_u32 vcc, 16, v1
v_cndmask_b32 v40, v41, v40, vcc
buffer_store_dword v21, v40, s[24:27], s7 offen""")
    P.append(I("s_endpgm"))
    return P

def setup_tr_gu_into(base):
    o = []
    for i in setup_tr_gu(base):
        t = i.text
        for a, b in ((40, 59), (41, 60), (42, 61), (43, 62), (44, 63), (45, 64), (46, 65)):
            t = re.sub(rf"\bv{a}\b", f"v{b}", t)
        o.append(I(t))
    return o

def k2():
    P = L("s_cmp_ge_u32 s2, 256\ns_cbranch_scc1 K2_END")
    if OPT['stamp']: P += L("s_memrealtime s[90:91]\ns_memtime s[92:93]")
    P += L("""s_load_dwordx2 s[4:5], s[0:1], 0
s_load_dwordx2 s[6:7], s[0:1], 56
s_load_dwordx2 s[24:25], s[0:1], 72
v_lshrrev_b32 v1, 6, v0
s_and_b32 s26, s2, 7
s_lshr_b32 s27, s2, 3
v_readfirstlane_b32 s3, v1
v_and_b32 v1, 63, v0
s_and_b32 s28, s26, 3
s_lshl_b32 s28, s28, 3
s_and_b32 s29, s27, 7
s_add_u32 s28, s28, s29
s_lshr_b32 s29, s26, 2
s_lshl_b32 s29, s29, 2
s_lshr_b32 s27, s27, 3
s_add_u32 s29, s29, s27
s_mul_i32 s30, s3, 18
s_cmp_eq_u32 s3, 3
s_cselect_b32 s31, 20, 18
s_cselect_b32 s36, 7, 6
s_mul_i32 s32, s28, 74
s_add_u32 s32, s32, s30
s_lshl_b32 s32, s32, 12
s_mul_i32 s33, s29, 74
s_add_u32 s33, s33, s30
s_mul_i32 s33, s33, 5120""")
    P += L(f"s_add_u32 s32, s32, {HF_OFF}\ns_add_u32 s33, s33, {WF_OFF}")
    P += L("""v_lshlrev_b32 v2, 4, v1
v_add_u32 v3, 4096, v2
s_waitcnt lgkmcnt(0)
s_add_u32 s8, s24, s32
s_addc_u32 s9, s25, 0
s_lshl_b32 s10, s31, 12
s_mov_b32 s11, 0x20000
s_add_u32 s12, s24, s33
s_addc_u32 s13, s25, 0
s_mul_i32 s14, s31, 5120
s_mov_b32 s15, 0x20000
s_mov_b32 s34, 0
s_mov_b32 s35, 0""")
    P += srd(16, 4, 5, 2621440) + srd(20, 6, 7, 2621440)
    SB = 40; ACC = SB + 108
    def loads(st):
        r = SB + 36 * st
        hl = [I(f"buffer_load_dwordx4 v[{r+4*i}:{r+4*i+3}], v2, s[8:11], s34 offen offset:{1024*i}") for i in range(4)]
        wl = [I(f"buffer_load_dwordx4 v[{r+16+4*i}:{r+19+4*i}], v2, s[12:15], s35 offen offset:{1024*i}") for i in range(4)]
        wl.append(I(f"buffer_load_dwordx4 v[{r+32}:{r+35}], v3, s[12:15], s35 offen"))
        return hl, wl
    adv = lambda: L("s_add_u32 s34, s34, 4096\ns_add_u32 s35, s35, 5120")
    for st in range(3):
        hl, wl = loads(st); P += wl + hl + adv()
    P += L("s_mul_i32 s37, s28, 81920\ns_mul_i32 s38, s29, 160\ns_add_u32 s37, s37, s38")
    for i in range(3):
        P += L(f"""v_add_u32 v4, {256*i}, v0
v_mul_u32_u24 v5, 6554, v4
v_lshrrev_b32 v5, 16, v5
v_mul_u32_u24 v6, 10, v5
v_sub_u32 v6, v4, v6
v_mul_u32_u24 v7, 1280, v5
v_lshl_add_u32 v{10+i}, v6, 4, v7
v_mul_u32_u24 v7, 336, v5
v_lshl_add_u32 v{13+i}, v6, 5, v7""")
    P += L(f"v_mov_b32 v7, {HUGE}\nv_cmp_gt_u32 vcc, 128, v0\nv_cndmask_b32 v12, v7, v12, vcc")
    for i in range(3):
        P.append(I(f"buffer_load_dwordx4 v[{16+4*i}:{19+4*i}], v{10+i}, s[16:19], s37 offen"))
    for i in range(80): P.append(I(f"v_mov_b32 v{ACC+i}, 0"))
    P += L("""v_and_b32 v4, 15, v1
v_mul_u32_u24 v4, 336, v4
v_lshrrev_b32 v5, 4, v1
v_lshl_add_u32 v4, v5, 4, v4
s_mul_i32 s38, s3, 21504
v_add_u32 v9, s38, v4
s_mov_b32 s50, 0xbfb8aa3b
s_mov_b32 s52, 0xffff0000
s_waitcnt vmcnt(21)""")
    P.append(I("K2_LOOP:"))
    for st in range(3):
        r = SB + 36 * st
        hl, wl = loads(st)
        P.append(I("s_waitcnt vmcnt(18)"))
        for n in range(5):
            for m in range(4):
                a = ACC + (n * 4 + m) * 4
                P.append(I(f"v_mfma_f32_16x16x32_bf16 v[{a}:{a+3}], v[{r+16+4*n}:{r+19+4*n}], v[{r+4*m}:{r+4*m+3}], v[{a}:{a+3}]"))
                if n == 4: P.append(hl[m])
            if n < 4: P.append(wl[n])
        P.append(wl[4])
        P += adv()
    P += L("s_sub_u32 s36, s36, 1\ns_cmp_lg_u32 s36, 0\ns_cbranch_scc1 K2_LOOP")
    if OPT['stamp']: P += L("s_memtime s[94:95]")
    P.append(I("s_nop 7"))
    for n in range(5):
        for m in range(4):
            a = ACC + (n * 4 + m) * 4
            P.append(I(f"ds_write_b128 v9, v[{a}:{a+3}] offset:{m*5376 + n*64}"))
    P += L("s_waitcnt lgkmcnt(0)\ns_barrier")
    rd = {}
    for i in range(3):
        for s in range(4):
            for hlf in range(2):
                d = SB + 32 * i + 8 * s + 4 * hlf
                r = I(f"ds_read_b128 v[{d}:{d+3}], v{13+i} offset:{s*21504 + 16*hlf}"); P.append(r); rd[(i, s)] = r
    P.append(I("s_waitcnt vmcnt(0)"))
    for i in range(3):
        b = SB + 32 * i; T = 140
        P.append(Wait(lg=rd[(i, 3)]))
        for j in range(8): P.append(I(f"v_add_f32 v{b+j}, v{b+j}, v{b+8+j}"))
        for j in range(8): P.append(I(f"v_add_f32 v{b+j}, v{b+j}, v{b+16+j}"))
        for j in range(8): P.append(I(f"v_mul_f32 v{b+8+j}, s50, v{b+j}"))
        for j in range(8):
            P.append(I(f"v_exp_f32 v{b+8+j}, v{b+8+j}"))
            x = 16 + 4 * i + (j >> 1)
            P.append(I(f"v_and_b32 v{b+16+j}, s52, v{x}" if j & 1 else f"v_lshlrev_b32 v{b+16+j}, 16, v{x}"))
        for j in range(8): P.append(I(f"v_add_f32 v{b+8+j}, 1.0, v{b+8+j}"))
        for j in range(8):
            P.append(I(f"v_rcp_f32 v{b+8+j}, v{b+8+j}"))
            P.append(I(f"v_mul_f32 v{b+j}, v{b+j}, v{b+24+j}"))
        for j in range(8): P.append(I(f"v_fma_f32 v{b+j}, v{b+j}, v{b+8+j}, v{b+16+j}"))
        for j in range(4): P.append(I(f"v_cvt_pk_bf16_f32 v{b+24+j}, v{b+2*j}, v{b+2*j+1}"))
        P.append(I(f"buffer_store_dwordx4 v[{b+24}:{b+27}], v{10+i}, s[20:23], s37 offen"))
    if OPT['stamp']:
        P += L(f"""s_memrealtime s[96:97]
s_memtime s[98:99]
s_waitcnt lgkmcnt(0)
s_sub_u32 s94, s94, s92
s_sub_u32 s98, s98, s92
v_mov_b32 v4, s90
v_mov_b32 v5, s96
v_mov_b32 v6, s94
v_mov_b32 v7, s98
s_lshl_b32 s38, s2, 2
s_add_u32 s38, s38, s3
s_lshl_b32 s38, s38, 4
s_add_u32 s38, s38, {ST_OFF + 0x20000}
s_mov_b32 s8, s24
s_mov_b32 s9, s25
s_mov_b32 s10, {WS_REC}
v_mov_b32 v8, {HUGE}
v_cmp_eq_u32 vcc, 0, v1
v_cndmask_b32 v8, v8, v1, vcc
buffer_store_dwordx4 v[4:7], v8, s[8:11], s38 offen""")
    P.append(I("K2_END:"))
    P.append(I("s_endpgm"))
    return P

def desc(name, vgpr, accum, sgpr=102):
    return f""".p2align 6
.amdhsa_kernel {name}
  .amdhsa_next_free_vgpr {vgpr}
  .amdhsa_next_free_sgpr {sgpr}
  .amdhsa_accum_offset {accum}
  .amdhsa_group_segment_fixed_size 0
  .amdhsa_kernarg_size 80
  .amdhsa_user_sgpr_count 2
  .amdhsa_user_sgpr_kernarg_segment_ptr 1
  .amdhsa_system_sgpr_workgroup_id_x 1
.end_amdhsa_kernel
"""

def build(path):
    hdr = open('cdna_kernels/' + NAME + '.s.ref').read().split('\n')
    hdr = [l for l in hdr if l.startswith(';') and '@launch' not in l and 'Override launch' not in l and 'grid=ceil' not in l]
    s = "\n".join(hdr) + "\n"
    s += "; @launch kernel=blk_k1_kernel grid=(256,1,1) block=(256,1,1) lds=163840\n"
    s += "; @launch kernel=blk_k2_kernel grid=(256,1,1) block=(256,1,1) lds=98304\n"
    s += '.amdgcn_target "amdgcn-amd-amdhsa--gfx950"\n.text\n'
    s += ".globl blk_k1_kernel\n.p2align 8\n.type blk_k1_kernel,@function\nblk_k1_kernel:\n"
    s += text_of(resolve(k1_common())) + "\n"
    for tag in ('KVQ', 'KVGU', 'GU3'):
        s += ".p2align 6\n" + text_of(resolve(k1_path(tag))) + "\n"
    s += "K1_END:\n    s_endpgm\n"
    s += ".globl blk_k2_kernel\n.p2align 8\n.type blk_k2_kernel,@function\nblk_k2_kernel:\n"
    s += text_of(resolve(k2())) + "\n"
    s += "    s_nop 0\n" * 2100 if False else ""
    s += ".fill 8448, 4, 0xbf800000\n" if OPT['codepf'] else ""
    s += '.section .rodata,"a"\n' + desc("blk_k1_kernel", 512, 256) + desc("blk_k2_kernel", 256, 256)
    open(path, 'w').write(s)

if __name__ == "__main__":
    out = sys.argv[1] if len(sys.argv) > 1 else 'cdna_kernels/' + NAME + '.s'
    for a in sys.argv[2:]:
        k, v = a.split('='); OPT[k] = int(v)
    build(out)
```

```python
import re

def expand(op):
    op = op.strip()
    m = re.fullmatch(r'-?\|?(?:abs\()?([vas])\[(\d+):(\d+)\]\)?\|?', op)
    if m: return [f"{m.group(1)}{i}" for i in range(int(m.group(2)), int(m.group(3)) + 1)]
    m = re.fullmatch(r'-?\|?(?:abs\()?([vas])(\d+)\)?\|?', op)
    if m: return [f"{m.group(1)}{m.group(2)}"]
    if op in ('vcc', 'exec', 'm0', 'scc'): return [op]
    if op in ('vcc_lo', 'vcc_hi'): return ['vcc']
    if op in ('exec_lo', 'exec_hi'): return ['exec']
    return []

TRANS = ('v_exp_f32', 'v_log_f32', 'v_rcp_f32', 'v_rsq_f32', 'v_sqrt_f32', 'v_sin_f32', 'v_cos_f32')

class Ins:
    __slots__ = ('text', 'mn', 'kind', 'rd', 'wr', 'passes', 'srcc', 'tok', 'wvm', 'wlg', 'cost', 'store_data', 'label', 'noemit')
    def __init__(self, text):
        self.noemit = False; self.text = text; self.tok = None; self.wvm = None; self.wlg = None
        self.passes = 0; self.srcc = []; self.store_data = []; self.label = False
        t = text.split(';')[0].strip()
        if t.endswith(':') or t.startswith('.'):
            self.mn = t; self.kind = 'label'; self.rd = set(); self.wr = set(); self.cost = 0; self.label = True; return
        parts = t.split(None, 1)
        mn = parts[0]; self.mn = mn
        rest = parts[1] if len(parts) > 1 else ''
        ops = [o.strip() for o in re.split(r',(?![^\[]*\])', rest)] if rest else []
        mods = ''
        if ops:
            lp = ops[-1].split(None, 1)
            ops[-1] = lp[0]; mods = lp[1] if len(lp) > 1 else ''
        E = [expand(o) for o in ops]
        rd, wr = set(), set()
        def R(*idx):
            for i in idx:
                if i < len(E): rd.update(E[i])
        def W(*idx):
            for i in idx:
                if i < len(E): wr.update(E[i])
        allr = range(len(E))
        cost = 4
        if mn.startswith('v_mfma'):
            k = 'mfma'; W(0); R(1, 2, 3); self.srcc = E[3] if len(E) > 3 else []
            self.passes = 8 if '32x32' in mn else 4; cost = 8
        elif mn.startswith('v_cmp'):
            k = 'valu'; W(0); R(*list(allr)[1:]); rd.add('exec')
        elif mn in ('v_readfirstlane_b32', 'v_readlane_b32'):
            k = 'valu'; W(0); R(*list(allr)[1:])
        elif mn.startswith('v_permlane') and 'swap' in mn:
            k = 'valu'; W(0, 1); R(0, 1)
        elif mn.startswith('v_'):
            k = 'trans' if mn.replace('_e32', '').replace('_e64', '') in TRANS else 'valu'
            if k == 'trans': cost = 8
            W(0)
            if mn.startswith(('v_add_co', 'v_sub_co', 'v_addc_co', 'v_subb_co')): W(1); R(*list(allr)[2:])
            else: R(*list(allr)[1:])
            if mn.startswith(('v_fmac', 'v_dot2c', 'v_writelane')): R(0)
            if mn.startswith('v_cndmask') and len(ops) == 3: rd.add('vcc')
        elif mn.startswith('ds_read') or mn.startswith('ds_bpermute') or mn.startswith('ds_swizzle'):
            k = 'lds'; W(0); R(*list(allr)[1:])
        elif mn.startswith('ds_'):
            k = 'lds'; R(*allr)
        elif mn.startswith('buffer_') or mn.startswith('global_'):
            k = 'vmem'; cost = 8
            ml = mods.split()
            if 'lds' in ml or '_lds_' in mn:
                R(*allr); rd.add('m0')
            elif 'load' in mn:
                W(0); R(*list(allr)[1:])
            else:
                R(*allr)
                if 'store' in mn and ('x4' in mn or 'x3' in mn):
                    self.store_data = E[0] if mn.startswith('buffer_') else E[1]
                if 'atomic' in mn and 'sc0' in ml: W(0)
        elif mn.startswith('s_load') or mn in ('s_memtime', 's_memrealtime'):
            k = 'smem'; W(0); R(*list(allr)[1:])
        elif mn in ('s_waitcnt', 's_barrier', 's_nop', 's_sleep', 's_setprio', 's_endpgm', 's_branch') or mn.startswith('s_cbranch'):
            k = 'ctrl'; cost = 4
            if mn == 's_nop': cost = 4 * (int(ops[0], 0) + 1) if False else 4
        elif mn.startswith('s_cmp') or mn.startswith('s_bitcmp'):
            k = 'salu'; R(*allr); wr.add('scc')
        elif mn.startswith('s_'):
            k = 'salu'; W(0); R(*list(allr)[1:])
            if 'saveexec' in mn: wr.add('exec'); rd.add('exec')
        else:
            raise ValueError("unknown instr " + text)
        self.kind = k; self.rd = rd; self.wr = wr; self.cost = cost
    def states(self):
        if self.label: return 0
        if self.mn == 's_nop': return int(self.text.split()[1], 0) + 1
        return 1

class Wait(Ins):
    def __init__(self, vm=None, lg=None):
        self.noemit = False; self.text = None; self.mn = 'WAIT'; self.kind = 'ctrl'; self.rd = set(); self.wr = set()
        self.passes = 0; self.srcc = []; self.store_data = []; self.label = False; self.cost = 2
        self.tok = None; self.wvm = vm; self.wlg = lg

def I(text):
    return Ins(text)

def L(text):
    return [Ins(t.strip()) for t in text.strip().split('\n') if t.strip()]

def isvalu(i): return i.kind in ('valu', 'trans')

def need_states(p, c):
    n = 0
    if isvalu(p):
        pv = {r for r in p.wr if r[0] in 'va' and r not in ('vcc',)}
        ps = {r for r in p.wr if r[0] == 's' or r == 'vcc'}
        if c.kind == 'mfma' and pv & c.rd: n = max(n, 2)
        if p.kind == 'trans' and c.kind == 'valu' and pv & c.rd: n = max(n, 1)
        if p.kind == 'trans' and c.kind in ('vmem', 'lds', 'mfma') and pv & c.rd: n = max(n, 2 if c.kind == 'mfma' else 1)
        if isvalu(c) and ps & c.rd: n = max(n, 4 if c.mn.startswith(('v_readlane', 'v_writelane')) else 2)
        if c.kind == 'vmem' and ps & c.rd: n = max(n, 5)
        if c.kind == 'salu' and ps & c.rd: n = max(n, 1)
        if c.mn.startswith(('v_readfirstlane', 'v_readlane')) and pv & c.rd: n = max(n, 1)
        if (c.mn.startswith('v_permlane') or 'dpp' in c.mn or 'row_' in (c.text or '') or 'quad_perm' in (c.text or '')) and pv & c.rd: n = max(n, 2)
        if 'exec' in p.wr: n = max(n, 5)
    if p.kind == 'mfma':
        big = 12 if p.passes == 8 else 8
        D = p.wr
        if c.kind == 'mfma':
            cc = set(c.srcc)
            ab = c.rd - cc if cc else c.rd
            if D & ab: n = max(n, big)
            if cc & D and (cc != D or c.passes != p.passes): n = max(n, big - 2)
            if (not (cc & D)) and (c.wr & D) and False: n = max(n, big)
        elif c.kind in ('valu', 'trans', 'vmem', 'lds'):
            if D & (c.rd | c.wr): n = max(n, big)
        if isvalu(c) and set(p.srcc) & c.wr: n = max(n, 7 if p.passes == 8 else 3)
    if p.kind == 'salu' and 'm0' in p.wr and c.kind == 'vmem' and 'm0' in c.rd: n = max(n, 1)
    if p.store_data:
        sd = set(p.store_data)
        if sd & c.wr: n = max(n, 2 if isvalu(c) else 1)
    return n

def resolve(prog):
    vm = 0; lg = 0; vm_done = 0; lg_done = 0
    out = []
    for ins in prog:
        if isinstance(ins, Wait):
            parts = []
            if ins.wvm is not None:
                idx = vm if ins.wvm == 'all' else ins.wvm.tok[1]
                assert ins.wvm == 'all' or ins.wvm.tok[0] == 'vm', ins.wvm.text
                if idx > vm_done:
                    n = min(vm - idx, 63); parts.append(f"vmcnt({n})"); vm_done = max(vm_done, vm - n)
            if ins.wlg is not None:
                idx = lg if ins.wlg == 'all' else ins.wlg.tok[1]
                assert ins.wlg == 'all' or ins.wlg.tok[0] == 'lg', ins.wlg.text
                if idx > lg_done:
                    n = min(lg - idx, 15); parts.append(f"lgkmcnt({n})"); lg_done = max(lg_done, lg - n)
            if parts: out.append(Ins("s_waitcnt " + " ".join(parts)))
            continue
        if ins.kind == 'vmem': vm += 1; ins.tok = ('vm', vm)
        elif ins.kind == 'lds': lg += 1; ins.tok = ('lg', lg)
        elif ins.kind == 'smem': lg += 1; ins.tok = ('lg', lg)
        elif ins.mn == 's_waitcnt':
            m = re.search(r'vmcnt\((\d+)\)', ins.text)
            if m: vm_done = max(vm_done, vm - int(m.group(1)))
            m = re.search(r'lgkmcnt\((\d+)\)', ins.text)
            if m: lg_done = max(lg_done, lg - int(m.group(1)))
        out.append(ins)
    res = []
    for c in out:
        if not c.label and not c.noemit:
            dist = 0; need = 0
            for p in reversed(res):
                if dist >= 20: break
                if p.label: continue
                n = need_states(p, c)
                if n > dist: need = max(need, n - dist)
                dist += p.states()
            while need > 0:
                k = min(need, 16); res.append(Ins(f"s_nop {k-1}")); need -= k
        res.append(c)
    return res

def text_of(prog):
    return "\n".join(("" if i.label else "    ") + i.text for i in prog if not i.noemit)
```

```python
import sys
from glib import *

NAME = "recurrent_scan__linear_attn_block__glu_gated_swiglu__prompt"
HF_OFF, WF_OFF, KVS_OFF, ST_OFF = 0x0, 0xA00000, 0xE00000, 0xF00000
PB_OFF = 0x1000000
FL_E, FL_H, FL_W = 0xEA2000, 0xEA4000, 0xEA6000
KVF_OFF = 0x1200000
WS_REC = 0x1400000
HUGE = 0x40000000
XCH = 25600
KVB = 40960 + 25600
SJ = 28672
SLOT = 5120
XR = 96
WFR = 224
KVD = 208
OPT = dict(stamp=False, R=4, barpos=2, budget=18, codepf=True, bud_kvq=6, bud_kvgu=8, atw=600, pr_GU3=1, pr_GU2=1, pr_KVQ=0, pr_KVGU=1, kvfine=0, cflag=0, wpollk=4, lrate=3, lw0=1, lfl=2, ofl=11, efw=600, nk0=2, nk1=8, slp=6, plw=1200, ldw=700, kvx=1, wpro=2, wc0=7, fused=0, cap=5, nofill=0, pstamp=0, dist=6, xahead=4)
PR = {0: (), 1: (2,), 2: (0, 2)}
KVGU_TR = [6, 7, 8, 9, 19, 22, 23, 24]

class Bundle:
    def __init__(self, ins, cost=None, sync=False):
        self.ins = ins if isinstance(ins, list) else [ins]
        self.cost = sum(i.cost for i in self.ins) if cost is None else cost
        self.sync = sync

def B1(lines):
    return [Bundle(i) for i in L(lines)] if isinstance(lines, str) else [Bundle(i) for i in lines]

def srd(d, lo, hi, n):
    return L(f"s_mov_b32 s{d}, s{lo}\ns_mov_b32 s{d+1}, s{hi}\ns_mov_b32 s{d+2}, {n}\ns_mov_b32 s{d+3}, 0x20000")

def k1_common():
    P = []
    P += L("s_cmp_ge_u32 s2, 256\ns_cbranch_scc1 K1_END")
    if OPT['stamp']: P += L("s_memrealtime s[90:91]\ns_memtime s[92:93]")
    P += L("""s_memrealtime s[100:101]
s_load_dwordx4 s[68:71], s[0:1], 0
s_load_dwordx2 s[72:73], s[0:1], 16
s_load_dwordx4 s[76:79], s[0:1], 32
s_load_dwordx2 s[74:75], s[0:1], 48
s_load_dwordx4 s[80:83], s[0:1], 64
v_lshrrev_b32 v1, 6, v0
s_and_b32 s4, s2, 7
s_lshr_b32 s5, s2, 3
v_readfirstlane_b32 s3, v1
v_and_b32 v1, 63, v0""")
    R = OPT['R']
    if R == 4:
        P += L("""s_and_b32 s7, s4, 3
s_lshl_b32 s7, s7, 2
s_lshr_b32 s4, s4, 2
s_lshl_b32 s4, s4, 3
s_lshr_b32 s6, s5, 2
s_and_b32 s5, s5, 3
s_add_u32 s7, s7, s5
s_add_u32 s5, s4, s6
s_mov_b32 s4, s7""")
    elif R == 8:
        P += L("""s_and_b32 s7, s4, 1
s_lshl_b32 s7, s7, 3
s_lshr_b32 s4, s4, 1
s_lshl_b32 s4, s4, 2
s_lshr_b32 s6, s5, 3
s_and_b32 s5, s5, 7
s_add_u32 s7, s7, s5
s_add_u32 s5, s4, s6
s_mov_b32 s4, s7""")
    elif R == 2:
        P += L("""s_lshl_b32 s4, s4, 1
s_and_b32 s7, s5, 1
s_add_u32 s4, s4, s7
s_lshr_b32 s5, s5, 1""")
    P += L("s_mul_i32 s6, s3, 40960")
    xs, xl = x_dma()
    P += xs
    P += L("s_waitcnt lgkmcnt(0)")
    P += L(f"""s_or_b32 s100, s100, 1
s_mov_b32 s101, 0x40000
v_mov_b32 v20, {HUGE}
v_cmp_eq_u32 vcc, 0, v1
v_cndmask_b32 v20, v20, 0, vcc""")
    P += srd(8, 68, 69, 2621440)
    late = late_srds()
    P += srd(24, 82, 83, WS_REC)
    P += L("s_cmp_eq_u32 s5, 15\ns_cbranch_scc1 K1_GU2")
    for c in range(OPT['xahead']):
        for rg in range(4): P += xl[4 * c + rg]
    P += late
    P += L("s_cmp_lt_u32 s5, 4\ns_cbranch_scc1 K1_KVQ\ns_cmp_lt_u32 s5, 8\ns_cbranch_scc1 K1_KVGU\ns_branch K1_GU3")
    return P

def late_srds():
    P = []
    for d, lo, n in ((12, 76, 2211840), (16, 78, 2211840), (20, 70, 2457600)):
        P += L(f"s_sub_u32 s{d}, s{lo}, 3072\ns_subb_u32 s{d+1}, s{lo+1}, 0\ns_mov_b32 s{d+2}, {n+3072}\ns_mov_b32 s{d+3}, 0x20000")
    P += srd(28, 80, 81, 256)
    P += L(f"s_or_b32 s7, s2, s3\ns_cmp_eq_u32 s7, 0\ns_cselect_b32 s7, 240, {HUGE}\nv_mov_b32 v26, s100\nv_mov_b32 v27, 240")
    P.append(raw("buffer_store_dword v26, v20, s[28:31], s7 offen sc1"))
    return P

def x_dma():
    P = L("""v_lshrrev_b32 v40, 3, v1
v_mul_u32_u24 v41, 1280, v40
v_lshrrev_b32 v42, 4, v1
v_and_b32 v43, 7, v1
v_xor_b32 v43, v43, v42
v_lshl_add_u32 v30, v43, 4, v41
v_xor_b32 v31, 64, v30
v_add_u32 v31, 10240, v31
s_mul_i32 s43, s4, 163840
s_add_u32 s43, s43, s6
s_add_u32 s44, s43, 20480""")
    xl = []
    for c in range(10):
        for rg in range(4):
            xl.append([I(f"s_add_u32 m0, s6, {c*4096 + rg*1024 - c*128}"),
                       I(f"buffer_load_dwordx4 v{30+(rg&1)}, s[8:11], s{43+(rg>>1)} offen offset:{c*128} lds")])
    return P, xl

def setup_tr_gu(base):
    if isinstance(base, int): base = list(range(base, base + 8))
    P = L("""v_lshrrev_b32 v40, 4, v1
v_and_b32 v41, 1, v40
v_lshrrev_b32 v40, 1, v40
v_bfe_u32 v42, v1, 2, 2
v_and_b32 v43, 3, v1
v_lshl_add_u32 v44, v40, 3, v42
v_lshlrev_b32 v44, 7, v44
v_lshl_add_u32 v44, v41, 11, v44
v_and_b32 v45, 1, v43
v_lshl_add_u32 v44, v45, 3, v44
v_and_b32 v45, 2, v42
v_lshl_add_u32 v45, v41, 2, v45
v_lshrrev_b32 v43, 1, v43""")
    for t in range(4):
        P += L(f"""v_xor_b32 v46, {2*t}, v45
v_add_u32 v46, v46, v43
v_lshl_add_u32 v{base[2*t]}, v46, 4, v44
v_add_u32 v{base[2*t+1]}, 81920, v{base[2*t]}""")
    return P

def setup_tr_5(base):
    return L(f"""v_lshrrev_b32 v40, 4, v1
v_and_b32 v41, 1, v40
v_lshrrev_b32 v40, 1, v40
v_bfe_u32 v42, v1, 2, 2
v_and_b32 v43, 3, v1
v_lshl_add_u32 v44, v40, 3, v42
v_mul_u32_u24 v44, 320, v44
v_mul_u32_u24 v45, 40, v41
v_lshl_add_u32 v45, v43, 3, v45
v_add_u32 v{base}, v44, v45
v_add_u32 v{base+1}, 81920, v{base}
v_lshl_add_u32 v45, v41, 2, v43
v_mul_u32_u24 v45, 40, v45
v_add3_u32 v{base+2}, v44, v45, 32
v_add_u32 v{base+3}, 81920, v{base+2}""")

def setup_dma_gu(base):
    return L(f"""v_lshrrev_b32 v40, 3, v1
v_mul_u32_u24 v41, 3456, v40
v_and_b32 v42, 7, v1
v_and_b32 v40, 2, v40
v_xor_b32 v42, v42, v40
v_lshl_add_u32 v42, v42, 4, v41
v_xor_b32 v43, 64, v42
v_add_u32 v{base}, 3072, v42
v_add_u32 v{base+1}, {27648+2048}, v42
v_add_u32 v{base+2}, 1024, v43
v_add_u32 v{base+3}, 27648, v43""")

def setup_dma_5(base, kv):
    P = []
    for p in range(5):
        P += L(f"""v_add_u32 v40, {64*p}, v1
v_mul_u32_u24 v41, 3277, v40
v_lshrrev_b32 v41, 16, v41
v_mul_u32_u24 v42, 20, v41
v_sub_u32 v42, v40, v42
v_mul_u32_u24 v41, 3840, v41
v_add_u32 v41, {3072 - 1024*(p&3)}, v41
v_lshl_add_u32 v{base+p}, v42, 4, v41""")
        if kv:
            P += L(f"""v_cmp_lt_u32 vcc, 9, v42
v_mov_b32 v43, 1280
v_mov_b32 v44, 2400
v_cndmask_b32 v43, v43, v44, vcc
v_add_u32 v{base+p}, v{base+p}, v43""")
    return P

class Grp:
    def __init__(self, typ, acc, trb, dmab, sbase):
        self.typ = typ; self.T = 4 if typ == 'GU' else 5
        self.acc = acc; self.trb = trb; self.dmab = dmab; self.sbase = sbase

def dma_bundles(groups, S):
    g, s = divmod(S, 10)
    if g >= len(groups): return []
    G = groups[g]
    out = []
    slot = (S % 5) * SLOT
    if G.typ == 'GU':
        for p in range(4):
            pre = []
            if p == 0: pre = L(f"s_add_u32 m0, s6, {slot}\ns_add_u32 s60, s{G.sbase}, {s*221184}")
            sr = 12 + 4 * (p >> 1)
            out.append(Bundle(pre + L(f"buffer_load_dwordx4 v{G.dmab+p}, s[{sr}:{sr+3}], s60 offen offset:{1024*p} lds")))
    else:
        for p in range(5):
            pre = []
            if p == 0: pre = L(f"s_add_u32 m0, s6, {slot}\ns_add_u32 s60, s{G.sbase}, {s*245760}")
            if p == 4: pre = L(f"s_add_u32 m0, s6, {slot + 4096}\ns_nop 0")
            out.append(Bundle(pre + L(f"buffer_load_dwordx4 v{G.dmab+p}, s[20:23], s60 offen offset:{1024*(p&3)} lds")))
    return out

NFR = 8
def tr_reads(groups, kk, si, t):
    g, k = divmod(kk, 40)
    if g >= len(groups): return []
    G = groups[g]
    S, q = divmod(kk, 4)
    off = (q & 1) * 40960 + (S % 5) * SLOT
    a = WFR + (si % NFR) * 4
    if G.typ == 'GU':
        v = (G.trb[2 * t + (q >> 1)] if isinstance(G.trb, list) else G.trb + 2 * t + (q >> 1)); d = 512
    else:
        d = 1280
        if t < 4: v = G.trb + (q >> 1); off += 80 * t
        else: v = G.trb + 2 + (q >> 1)
    return [I(f"ds_read_b64_tr_b16 a[{a}:{a+1}], v{v} offset:{off}"), I(f"ds_read_b64_tr_b16 a[{a+2}:{a+3}], v{v} offset:{off+d}")]

def norm_ins(k):
    o = []
    tm = [(34, 35), (36, 37), (38, 39), (88, 89)]
    for j in range(4):
        x = XR + 4 * k + j; a, b = tm[j]
        o.append(I(f"v_lshlrev_b32 v{a}, 16, v{x}")); o.append(I(f"v_and_b32 v{b}, s52, v{x}"))
    for j in range(4):
        a, b = tm[j]
        o.append(I(f"v_fma_f32 v{a}, v{a}, v32, v33")); o.append(I(f"v_fma_f32 v{b}, v{b}, v32, v33"))
    for j in range(4):
        x = XR + 4 * k + j; a, b = tm[j]
        o.append(I(f"v_cvt_pk_bf16_f32 v{x}, v{a}, v{b}"))
    return o

def gu_epilogue(acc, sreg, pk=False):
    sc = " sc1" if OPT['fused'] else ""
    o = []
    for t in range(4):
        H = 56
        for i0 in range(0, 8, 4):
            for j in range(4): o.append(I(f"v_accvgpr_read_b32 v{40+j}, a{acc+16*t+i0+j}"))
            for j in range(4): o.append(I(f"v_accvgpr_read_b32 v{44+j}, a{acc+16*t+8+i0+j}"))
            if pk:
                for j in (0, 2): o.append(I(f"v_pk_mul_f32 v[{48+j}:{49+j}], v[{40+j}:{41+j}], s[50:51] op_sel_hi:[1,0]"))
                for j in range(4): o.append(I(f"v_exp_f32 v{48+j}, v{48+j}"))
                for j in (0, 2): o.append(I(f"v_pk_mul_f32 v[{40+j}:{41+j}], v[{40+j}:{41+j}], v[{44+j}:{45+j}]"))
                for j in (0, 2): o.append(I(f"v_pk_add_f32 v[{48+j}:{49+j}], v[{48+j}:{49+j}], 1.0 op_sel_hi:[1,0]"))
                for j in range(4): o.append(I(f"v_rcp_f32 v{48+j}, v{48+j}"))
                for j in (0, 2): o.append(I(f"v_pk_mul_f32 v[{H+i0+j}:{H+i0+j+1}], v[{40+j}:{41+j}], v[{48+j}:{49+j}]"))
            else:
                for j in range(4): o.append(I(f"v_mul_f32 v{48+j}, s50, v{40+j}"))
                for j in range(4):
                    o.append(I(f"v_exp_f32 v{48+j}, v{48+j}")); o.append(I(f"v_mul_f32 v{40+j}, v{40+j}, v{44+j}"))
                for j in range(4): o.append(I(f"v_add_f32 v{48+j}, 1.0, v{48+j}"))
                for j in range(4): o.append(I(f"v_rcp_f32 v{48+j}, v{48+j}"))
                for j in range(4): o.append(I(f"v_mul_f32 v{H+i0+j}, v{40+j}, v{48+j}"))
        Q = 64 + 4 * (t & 1)
        for j in range(4):
            o.append(I(f"v_cvt_pk_bf16_f32 v{Q+j}, v{H+2*j}, v{H+2*j+1}"))
        o.append(I(f"buffer_store_dwordx4 v[{Q}:{Q+3}], v{28+(t>>1)}, s[24:27], s{sreg} offen offset:{512*(t&1)}{sc}"))
    return o

def phi_pack(acc, dst, raw_dst=None, pk=False):
    o = []
    for i0 in range(0, 16, 4):
        for j in range(4): o.append(I(f"v_accvgpr_read_b32 v{88+j}, a{acc+i0+j}"))
        if raw_dst is not None:
            o.append(I(f"v_cvt_pk_bf16_f32 v{raw_dst+i0//2}, v88, v89")); o.append(I(f"v_cvt_pk_bf16_f32 v{raw_dst+i0//2+1}, v90, v91"))
        if pk:
            for j in (0, 2): o.append(I(f"v_pk_mul_f32 v[{92+j}:{93+j}], v[{88+j}:{89+j}], s[50:51] op_sel:[0,1] op_sel_hi:[1,1]"))
        else:
            for j in range(4): o.append(I(f"v_mul_f32 v{92+j}, s51, v{88+j}"))
        for j in range(4):
            o.append(I(f"v_exp_f32_e64 v{92+j}, v{92+j} clamp")); o.append(I(f"v_max_f32 v{88+j}, s53, v{88+j}"))
        if pk:
            for j in (0, 2): o.append(I(f"v_pk_add_f32 v[{88+j}:{89+j}], v[{88+j}:{89+j}], v[{92+j}:{93+j}]"))
        else:
            for j in range(4): o.append(I(f"v_add_f32 v{88+j}, v{88+j}, v{92+j}"))
        o.append(I(f"v_cvt_pk_bf16_f32 v{dst+i0//2}, v88, v89")); o.append(I(f"v_cvt_pk_bf16_f32 v{dst+i0//2+1}, v90, v91"))
    return o

def raw_pack(acc, dst):
    o = []
    for i0 in range(0, 16, 4):
        for j in range(4): o.append(I(f"v_accvgpr_read_b32 v{88+j}, a{acc+i0+j}"))
        o.append(I(f"v_cvt_pk_bf16_f32 v{dst+i0//2}, v88, v89")); o.append(I(f"v_cvt_pk_bf16_f32 v{dst+i0//2+1}, v90, v91"))
    return o

def raw(text):
    i = I("s_nop 0"); i.text = text.replace("\n", "\n    "); i.mn = 'RAW'
    return i

def poll(lbl, lds, regs, nonce=False):
    o = [Wait(vm=lds[-1]), I(f"{lbl}_chk:")]
    if nonce: o += L("v_cmp_eq_u32 vcc, 0, v26")
    else:
        o += L(f"v_cmp_ne_u32 vcc, v{regs[0]}, v26")
        for r in regs[1:]: o += L(f"v_cmp_ne_u32 s[84:85], v{r}, v26\ns_or_b64 vcc, vcc, s[84:85]")
    o += L(f"""s_cmp_eq_u64 vcc, 0
s_cbranch_scc1 {lbl}_ok
s_cmp_eq_u32 s101, 0
s_cbranch_scc1 {lbl}_ok
s_sub_u32 s101, s101, 1
s_sleep {OPT['slp']}""")
    o.append(raw("\n".join(l.text for l in lds) + f"\ns_waitcnt vmcnt(0)\ns_branch {lbl}_chk"))
    o.append(I(f"{lbl}_ok:"))
    return o

def flag_store(sreg):
    return I(f"buffer_store_dword v26, v20, s[24:27], s{sreg} offen sc1")

def kv_epilogue(acc, tag, pk=False):
    F = []
    K0, K1, V0, V1, RK, RP = 40, 48, 56, 64, 72, 80
    F += B1(f"v_lshlrev_b32 v34, 4, v1\nv_add_u32 v34, s6, v34")
    def wr(fi, reg):
        return B1(f"ds_write_b128 v34, v[{reg}:{reg+3}] offset:{XCH + fi*1024}\nds_write_b128 v34, v[{reg+4}:{reg+7}] offset:{XCH + 6144 + fi*1024}")
    F += B1(phi_pack(acc + 0, K0, pk=pk)) + wr(0, K0); F += B1(phi_pack(acc + 16, K1, pk=pk)) + wr(1, K1)
    F += B1(raw_pack(acc + 32, V0)) + wr(2, V0); F += B1(raw_pack(acc + 48, V1)) + wr(3, V1)
    F += B1(phi_pack(acc + 64, RK, RP, pk=pk)) + wr(4, RK)
    F += B1("v_mov_b32 v88, 0x3f803f80")
    for j in range(8): F += B1(f"v_cndmask_b32 v{RP+j}, v{RP+j}, v88, s[54:55]")
    F += wr(5, RP)
    F += scc_safe(kv_addr_setup())
    F.append(Bundle(stamp(11) if OPT['kvfine'] else [], cost=0))
    F.append(Bundle([Wait(lg='all')], sync=True))
    rds = []
    for i in range(8):
        w, hf = i >> 1, i & 1
        off = (w & 1) * 40960 + hf * 6144
        r0 = I(f"ds_read_b128 a[{acc+8*i}:{acc+8*i+3}], v{35+(w>>1)} offset:{off}")
        r1 = I(f"ds_read_b128 a[{acc+8*i+4}:{acc+8*i+7}], v{37+(w>>1)} offset:{off}")
        F.append(Bundle(r0)); F.append(Bundle(r1)); rds.append(r1)
    F.append(Bundle([], cost=40))
    for i in range(8):
        c = f"a[{KVD}:{KVD+15}]" if i else "0"
        F.append(Bundle([Wait(lg=rds[i]), I(f"v_mfma_f32_32x32x16_bf16 a[{KVD}:{KVD+15}], a[{acc+8*i}:{acc+8*i+3}], a[{acc+8*i+4}:{acc+8*i+7}], {c}")], cost=32))
    for q in range(4): F += B1(f"v_mov_b32 v{51+4*q}, v26")
    F += scc_safe(kv_addr_setup2())
    for j in range(3):
        for i in range(3): F += B1(f"v_accvgpr_read_b32 v{48+4*j+i}, a{KVD+4*j+i}")
        F += B1(f"v_accvgpr_read_b32 v{60+j}, a{KVD+3+4*j}")
    for q in range(4):
        F.append(Bundle(I(f"buffer_store_dwordx4 v[{48+4*q}:{51+4*q}], v39, s[24:27], s62 offen offset:{1024*q} sc1")))
    F.append(Bundle(stamp(12) if OPT['kvfine'] else [], cost=0))
    F.append(Bundle([], cost=OPT['plw']))
    lds = [I(f"buffer_load_dwordx4 v[{64+4*q}:{67+4*q}], v40, s[24:27], s63 offen offset:{1024*q} sc1") for q in range(4)]
    for l in lds: F.append(Bundle(l))
    F.append(Bundle([], cost=OPT['ldw']))
    F.append(Bundle(poll(f"K1_{tag}_Z", lds, [67, 71, 75, 79]), cost=40))
    F.append(Bundle(stamp(14) if OPT['kvfine'] else [], cost=0))
    vals = [64 + 4 * j + i for j in range(4) for i in range(3)]
    for pat in ("quad_perm:[1,0,3,2]", "quad_perm:[2,3,0,1]", "row_half_mirror", "row_mirror"):
        for r in vals: F += B1(f"v_add_f32_dpp v{r}, v{r}, v{r} {pat} row_mask:0xf bank_mask:0xf")
    for j in range(3):
        F += B1(f"v_cvt_pk_bf16_f32 v{48+4*j}, v{64+4*j}, v{65+4*j}\nv_cvt_pk_bf16_f32 v{49+4*j}, v{66+4*j}, v{76+j}\nv_mov_b32 v{50+4*j}, v26")
        F.append(Bundle(I(f"buffer_store_dwordx4 v[{48+4*j}:{51+4*j}], v42, s[24:27], s64 offen offset:{32*j} sc1")))
    F.append(Bundle(stamp(15) if OPT['kvfine'] else [], cost=0))
    return F

def kv_addr_setup():
    return L(f"""v_and_b32 v88, 31, v1
v_lshrrev_b32 v89, 5, v1
s_and_b32 s7, s3, 1
s_lshl_b32 s7, s7, 4
s_lshr_b32 s84, s3, 1
s_lshl_b32 s84, s84, 6
s_add_u32 s7, s7, s84
s_lshl_b32 s85, s3, 2
v_add_u32 v90, s7, v88
v_add_u32 v91, s85, v88
v_add_u32 v92, 128, v90
v_add_u32 v93, 320, v91
v_cmp_gt_u32 vcc, 20, v88
v_mov_b32 v94, 320
v_cndmask_b32 v93, v94, v93, vcc
v_min_u32 v94, 19, v88
v_add_u32 v94, s85, v94
v_add_u32 v94, 240, v94
v_cmp_gt_u32 vcc, 16, v88
v_cndmask_b32 v92, v93, v92, vcc
v_cndmask_b32 v90, v94, v90, vcc
v_lshl_add_u32 v92, v89, 5, v92
v_lshl_add_u32 v90, v89, 5, v90
v_lshlrev_b32 v92, 4, v92
v_lshlrev_b32 v90, 4, v90
v_add_u32 v35, {XCH}, v92
v_add_u32 v36, {XCH+81920}, v92
v_add_u32 v37, {XCH}, v90
v_add_u32 v38, {XCH+81920}, v90""")

def kv_addr_setup2():
    return L(f"""v_and_b32 v88, 31, v1
v_lshlrev_b32 v89, 4, v1
v_mov_b32 v94, {HUGE}
v_cmp_gt_u32 vcc, 20, v88
v_cndmask_b32 v39, v94, v89, vcc
s_lshl_b32 s7, s5, 2
s_add_u32 s7, s7, s3
s_lshl_b32 s63, s7, 16
s_add_u32 s63, s63, {PB_OFF}
s_lshl_b32 s62, s4, 12
s_add_u32 s62, s62, s63
s_mul_i32 s64, s7, 1920
s_add_u32 s64, s64, {KVF_OFF}
s_mul_i32 s7, s4, 3
v_lshrrev_b32 v88, 4, v1
v_add_u32 v89, s7, v88
v_min_u32 v90, 39, v89
v_cmp_lt_u32 vcc, 19, v90
v_cndmask_b32 v91, 0, 1, vcc
v_mul_u32_u24 v92, 20, v91
v_sub_u32 v90, v90, v92
v_lshl_add_u32 v92, v91, 5, v90
v_and_b32 v93, 15, v1
v_lshlrev_b32 v95, 12, v93
v_lshl_add_u32 v40, v92, 4, v95
v_mul_u32_u24 v90, 96, v90
v_lshl_add_u32 v90, v91, 4, v90
v_cmp_gt_u32 vcc, 40, v89
v_cndmask_b32 v90, v94, v90, vcc
v_cmp_gt_u32 vcc, 3, v88
v_cndmask_b32 v90, v94, v90, vcc
v_cmp_eq_u32 vcc, 0, v93
v_cndmask_b32 v42, v94, v90, vcc""")

def side_job(tag):
    sc = " sc1" if OPT['fused'] else ""
    if tag == 'GU2':
        rounds = [('w2', 64 * j) for j in range(6)]; stg = 0; AH = 6; dst0 = 40
        P = L("s_lshl_b32 s86, s4, 2")
    else:
        rounds = [('w2', 384), ('wm', 0), ('wr', 0)]; stg = SJ; AH = 3; dst0 = 68
        P = L("s_sub_u32 s86, s5, 4\ns_lshl_b32 s86, s86, 4\ns_add_u32 s86, s86, s4\ns_lshl_b32 s86, s86, 2")
    P += L(f"""s_add_u32 s86, s86, s3
s_mov_b32 s36, s74
s_mov_b32 s37, s75
s_mov_b32 s38, 2211840
s_mov_b32 s39, 0x20000
s_mov_b32 s64, s72
s_mov_b32 s65, s73
s_mov_b32 s66, 819200
s_mov_b32 s67, 0x20000
v_lshrrev_b32 v72, 3, v1
v_mul_u32_u24 v73, 1280, v72
v_and_b32 v74, 7, v1
v_lshl_add_u32 v25, v74, 4, v73
v_lshrrev_b32 v73, 5, v1
v_mul_u32_u24 v73, 20, v73
v_and_b32 v75, 3, v72
v_add_u32 v73, v73, v75
v_mul_u32_u24 v73, 1280, v73
v_lshl_add_u32 v24, v74, 4, v73
v_lshrrev_b32 v72, 4, v1
v_lshrrev_b32 v73, 1, v72
v_and_b32 v72, 1, v72
v_lshlrev_b32 v73, 4, v73
v_lshl_add_u32 v73, v72, 2, v73
v_bfe_u32 v72, v1, 2, 2
v_add_u32 v73, v73, v72
v_lshlrev_b32 v73, 7, v73
v_and_b32 v72, 3, v1
v_lshl_add_u32 v73, v72, 3, v73
v_add_u32 v62, s6, v73
v_lshlrev_b32 v63, 4, v1""")
    def issue(r):
        kind, j = rounds[r]
        dst = dst0 + r
        o = L(("s_sub_u32 s87, 255, s86" if kind == 'wr' else f"s_add_u32 s87, s86, {j}") + f"""
s_mul_i32 s88, s87, 6554
s_lshr_b32 s88, s88, 16
s_mul_i32 s89, s88, 10
s_sub_u32 s89, s87, s89""")
        if kind == 'w2':
            offs, lim, srd_, v = (0, 8, 16, 24), 540, 36, 25
            o += L(f"s_mul_i32 s76, s88, 40960\ns_lshl_b32 s{dst}, s87, 12")
        elif kind == 'wm':
            offs, lim, srd_, v = (0, 8, 20, 28), 160, 64, 25
            o += L(f"s_mul_i32 s76, s88, 51200\ns_lshr_b32 s77, s88, 2\ns_add_u32 s77, s77, s88\ns_add_u32 s77, s77, 54\ns_mul_i32 s77, s77, 10\ns_add_u32 s77, s77, s89\ns_lshl_b32 s{dst}, s77, 12")
        else:
            offs, lim, srd_, v = (0, 40, 80, 120), 40, 64, 24
            o += L(f"s_mul_i32 s76, s88, 204800\ns_add_u32 s76, s76, 20480\ns_mul_i32 s77, s88, 50\ns_add_u32 s77, s77, 580\ns_add_u32 s77, s77, s89\ns_lshl_b32 s{dst}, s77, 12")
        o += L(f"""s_lshl_b32 s89, s89, 7
s_add_u32 s76, s76, s89
s_add_u32 s{dst}, s{dst}, {WF_OFF}
s_cmp_lt_u32 s87, {lim}
s_cselect_b32 s76, s76, {HUGE}
s_cselect_b32 s{dst}, s{dst}, {HUGE}
s_add_u32 s77, s76, {offs[1]*1280-1024}
s_add_u32 s78, s76, {offs[2]*1280-2048}
s_add_u32 s79, s76, {offs[3]*1280-3072}
s_add_u32 m0, s6, {stg + 4096*r}
s_nop 0""")
        l = [I(f"buffer_load_dwordx4 v{v}, s[{srd_}:{srd_+3}], s{76+p} offen offset:{1024*p} lds") for p in range(4)]
        return o + l, l[-1]
    lds = {}
    for r in range(len(rounds)):
        o, lds[r] = issue(r); P += o
    last = None
    Q = []
    for r in range(len(rounds)):
        st = [Wait(vm=lds[r])]
        rb_ = 64 + 16 * (r & 1)
        rds = []
        for t in range(4):
            a = I(f"ds_read_b64_tr_b16 v[{rb_+4*t}:{rb_+1+4*t}], v62 offset:{stg + 4096*r + 32*t}")
            b = I(f"ds_read_b64_tr_b16 v[{rb_+2+4*t}:{rb_+3+4*t}], v62 offset:{stg + 4096*r + 32*t + 1024}")
            st += [a, b]; rds.append(b)
        for t in range(4):
            last = I(f"buffer_store_dwordx4 v[{rb_+4*t}:{rb_+3+4*t}], v63, s[24:27], s{dst0+r} offen offset:{1024*t}{sc}")
            st += [Wait(lg=rds[t]), last]
        Q.append(st)
    return P, Q, last

def q_tail(acc, tag):
    sc = " sc1" if OPT['fused'] else ""
    P = []
    F1R = XR + 128 - 128
    P += L(f"""s_mul_i32 s57, s5, 15360
s_add_u32 s57, s57, {KVF_OFF}
v_lshlrev_b32 v3, 4, v0
v_add_u32 v6, 4096, v3
v_add_u32 v7, 8192, v3
v_add_u32 v8, 768, v0
v_min_u32 v8, 959, v8
v_lshlrev_b32 v9, 3, v8
v_lshlrev_b32 v8, 4, v8""")
    lds = [I(f"buffer_load_dwordx4 v[{224+4*i}:{227+4*i}], v{(3, 6, 7, 8)[i]}, s[24:27], s57 offen sc1") for i in range(4)]
    P += lds
    P += phi_pack(acc + 64, 72, pk=True) + phi_pack(acc + 0, 40, pk=True)
    P += poll(f"K1_{tag}_C", lds, [226, 230, 234, 238])
    P += L(f"v_lshlrev_b32 v3, 3, v0\nv_add_u32 v9, {KVB}, v9")
    P += L(f"""v_add_u32 v3, {KVB}, v3
v_bfe_u32 v4, v1, 4, 1
v_and_b32 v5, 3, v1
v_lshl_add_u32 v4, v4, 2, v5
v_subrev_u32 v5, 1, v4
v_min_u32 v5, 5, v5
v_cmp_gt_u32 vcc, 5, v4
v_cndmask_b32 v4, v5, v4, vcc
v_bfe_u32 v5, v1, 2, 2
v_mul_u32_u24 v5, 48, v5
v_lshl_add_u32 v4, v4, 3, v5
v_add_u32 v5, {KVB + 16*48}, v4
v_lshrrev_b32 v6, 5, v1
v_mul_u32_u24 v6, 192, v6
v_add3_u32 v4, v4, v6, s7""".replace("s7", "s84") .replace("v_add_u32 v3,", f"s_mov_b32 s84, {KVB}\nv_add_u32 v3,", 1))
    for i in range(3): P.append(I(f"ds_write_b64 v3, v[{224+4*i}:{225+4*i}] offset:{2048*i}"))
    P.append(I("ds_write_b64 v9, v[236:237]"))
    P += phi_pack(acc + 16, 48, pk=True)
    for b in (8, 14):
        for j in (0, 1, 4, 5): P.append(I(f"v_mov_b32 v{b+j}, 0"))
    P += phi_pack(acc + 32, 56, pk=True)
    P.append(Wait(lg='all')); P.append(I("s_barrier"))
    rd = []
    for h in range(8):
        P.append(I(f"ds_read_b64_tr_b16 a[{acc+4*h}:{acc+4*h+1}], v4 offset:{960*h}"))
        P.append(I(f"ds_read_b64_tr_b16 a[{acc+4*h+2}:{acc+4*h+3}], v4 offset:{960*h+8*48}"))
        r = I(f"ds_read_b64_tr_b16 v[{224+2*h}:{225+2*h}], v5 offset:{960*h}"); P.append(r); rd.append(r)
    ph3 = phi_pack(acc + 48, 64)
    P += ph3[:8]; ph3 = ph3[8:]
    for h in range(8):
        a = h & 3; b = 8 + 6 * (h & 1)
        if h == 6: P += ph3; ph3 = []
        P.append(Wait(lg=rd[h]))
        for j in range(2):
            if a & 1: P.append(I(f"v_cndmask_b32 v{b+2+j}, v{224+2*h+j}, 0, s[58:59]"))
            else: P.append(I(f"v_cndmask_b32 v{b+2+j}, 0, v{224+2*h+j}, s[58:59]"))
        d = XR + 16 * h
        P.append(I(f"v_mfma_f32_32x32x16_bf16 v[{d}:{d+15}], a[{acc+4*h}:{acc+4*h+3}], v[{40+4*h}:{43+4*h}], 0"))
        P += ph3[:5]; ph3 = ph3[5:]
        f2 = b + 2 if (a >> 1) == 0 else b
        ru = 72 + 4 * (h >> 2)
        P.append(I(f"v_mfma_f32_32x32x16_bf16 v[{d}:{d+15}], v[{f2}:{f2+3}], v[{ru}:{ru+3}], v[{d}:{d+15}]"))
        P += ph3[:5]; ph3 = ph3[5:]
        if h >= 6:
            for hh in range(3 * (h - 6), 3 * (h - 5)):
                dd = XR + 16 * hh
                P += L(f"v_add_f32 v{dd+12}, s53, v{dd+12}\nv_rcp_f32 v{dd+12}, v{dd+12}")
    P += L(f"s_mul_i32 s7, s5, 20480\ns_add_u32 s7, s7, s45\ns_add_u32 s7, s7, {54*4096}")
    for h in range(8):
        d = XR + 16 * h
        if h == 2:
            for hh in (6, 7):
                dd = XR + 16 * hh
                P += L(f"v_add_f32 v{dd+12}, s53, v{dd+12}\nv_rcp_f32 v{dd+12}, v{dd+12}")
        for j in range(0, 12, 2): P.append(I(f"v_pk_mul_f32 v[{d+j}:{d+j+1}], v[{d+j}:{d+j+1}], v[{d+12}:{d+13}] op_sel_hi:[1,0]"))
        Q = 40 + 4 * h
        for j in range(4): P.append(I(f"v_cvt_pk_bf16_f32 v{Q+j}, v{d+2*j}, v{d+2*j+1}"))
        for j in range(2): P.append(I(f"v_cvt_pk_bf16_f32 v{224+2*h+j}, v{d+8+2*j}, v{d+9+2*j}"))
        if h % 2 == 0: P.append(I(f"s_add_u32 s43, s7, {(h>>1)*4096}"))
        P.append(I(f"buffer_store_dwordx4 v[{Q}:{Q+3}], v28, s[24:27], s43 offen offset:{512*(h&1)}{sc}"))
    P.append(I(f"s_add_u32 s43, s7, {4*4096}"))
    for p in range(2):
        Q = 72 + 4 * p
        for jj in range(2):
            hA = 4 * p + 2 * jj
            for j in range(2):
                P.append(I(f"v_cndmask_b32 v{Q+2*jj+j}, v{224+2*(hA+1)+j}, v{224+2*hA+j}, s[58:59]"))
        P.append(I(f"buffer_store_dwordx4 v[{Q}:{Q+3}], v28, s[24:27], s43 offen offset:{512*p}{sc}"))
    return P

def Grp_prev_typ(groups, gi):
    return groups[gi - 1].typ if gi > 0 else None

def scc_safe(ins):
    out = []; cur = []
    for i in ins:
        if i.mn.startswith('s_cselect') or (i.mn.startswith('v_cndmask')) or (cur and i.mn.startswith('s_mov')):
            cur.append(i); continue
        if cur: out.append(Bundle(cur, cost=2 * len(cur))); cur = []
        if i.mn.startswith('s_cmp'): cur = [i]
        else: out.append(Bundle(i, cost=2 if i.kind == 'salu' else 4))
    if cur: out.append(Bundle(cur, cost=2 * len(cur)))
    return out

def stamp(idx):
    if not OPT['stamp']: return []
    return L(f"s_memtime s[94:95]\ns_waitcnt lgkmcnt(0)\ns_sub_u32 s94, s94, s92\nv_writelane_b32 v21, s94, {idx}")

def xch_free(d, o, okS):
    if not d(): return False
    if o[0] is None: o[0] = okS()
    return okS() > o[0]

def slots(ins):
    n = 0
    for i in ins:
        if i.label: continue
        if isinstance(i, Wait): n += 0
        elif i.kind == 'trans': n += 2
        elif i.kind == 'mfma': n += 8
        elif i.kind == 'vmem': n += 2
        else: n += 1
    return n

def k1_path(tag):
    types = {'KVQ': ['KV', 'Q'], 'KVGU': ['KV', 'GU'], 'GU3': ['GU', 'GU', 'GU'], 'GU2': ['GU', 'GU']}[tag]
    P = [I(f"K1_{tag}:")]
    if OPT['stamp']: P += L("v_mov_b32 v21, 0")
    xs, xl = x_dma()
    XA = OPT['xahead']
    if tag == 'GU2':
        P += late_srds()
        sp, sq, sjlast = side_job(tag); P += sp
        nl = I("buffer_load_dword v26, v27, s[28:31], 0 offen sc1")
        for st in sq[:-1]: P += st
        P.append(nl); P += sq[-1]
        P += xs
        for c in range(XA):
            for rg in range(4): P += xl[4 * c + rg]
    else:
        for c in range(XA):
            for rg in range(4):
                for i in xl[4 * c + rg]: i.noemit = True; P.append(i)
    sjq = []
    if tag == 'KVGU':
        sp, sjq, sjlast = side_job(tag); P += sp
    kv = types[0] == 'KV'
    U = []
    if OPT['codepf']:
        pf = I("s_nop 0"); pf.text = "global_load_dword v255, v94, s[98:99]"; pf.mn = 'RAW'
        U.append(L(f"""s_getpc_b64 s[98:99]
s_and_b32 s7, s4, 3
s_lshl_b32 s7, s7, 13
s_add_u32 s98, s98, s7
s_addc_u32 s99, s99, 0
s_cmp_lg_u32 s3, 0
s_cbranch_scc1 K1_{tag}_nopf
v_lshlrev_b32 v94, 7, v1""") + [pf, I(f"K1_{tag}_nopf:")])
    def add(ins):
        for bd in scc_safe(ins): U.append(bd.ins)
    if tag in ('GU3', 'GU2'):
        groups = [Grp('GU', 80, 2, 10, 40), Grp('GU', 0, 2, 10, 41), Grp('GU', 80, 2, 10, 42)]
        if tag == 'GU2': groups = [Grp('GU', 0, 2, 10, 40), Grp('GU', 80, 2, 10, 41)]
        add(setup_dma_gu(10))
        lastreg = (42, 48) if tag == 'GU3' else (41, 47)
        add(L(f"""s_sub_u32 s7, s5, 8
s_lshr_b32 s46, s7, 1
s_and_b32 s7, s7, 1
s_mul_i32 s47, s46, 7
s_add_u32 s48, s47, s7
s_add_u32 s47, s48, s7
s_add_u32 s48, s48, 4
s_cmp_eq_u32 s46, 3
s_subb_u32 s48, s48, 0
s_mul_i32 s41, s3, 55296
s_lshl_b32 s42, s47, 7
s_add_u32 s40, s41, s42
s_lshl_b32 s42, s48, 7
s_add_u32 s42, s41, s42
s_add_u32 s41, s40, 128
s_lshl_b32 s46, s47, 13
s_lshl_b32 s48, s48, 13""".replace("s_cmp_eq_u32 s46, 3\ns_subb_u32 s48, s48, 0", "s_cmp_eq_u32 s46, 3\ns_cselect_b32 s42, 1, 0\ns_sub_u32 s48, s48, s42")))
        if tag == 'GU2': add(L("s_mov_b32 s41, s42"))
        add(setup_tr_gu(2))
    else:
        add(L(f"""s_mov_b32 s54, 0xffff
s_mov_b32 s55, 0xffff
s_mov_b32 s58, -1
s_mov_b32 s59, 0"""))
        add(setup_dma_5(10, True))
        add(L("s_mul_i32 s40, s3, 61440\ns_mul_i32 s7, s5, 160\ns_add_u32 s40, s40, s7"))
        add(setup_tr_5(2))
        if tag == 'KVQ':
            groups = [Grp('KV', 0, 2, 10, 40), Grp('Q', 80, 2, 15, 41)]
            add(setup_dma_5(15, False))
            add(L("s_mul_i32 s41, s3, 61440\ns_mul_i32 s7, s5, 320\ns_add_u32 s41, s41, s7"))
        else:
            groups = [Grp('KV', 0, 2, 10, 40), Grp('GU', 80, KVGU_TR, 15, 41)]
            add(setup_dma_gu(15))
            add(L("""s_sub_u32 s7, s5, 4
s_cmp_eq_u32 s7, 3
s_cselect_b32 s41, 5, 6
s_mul_i32 s7, s7, 7
s_add_u32 s7, s7, s41
s_mul_i32 s41, s3, 55296
s_lshl_b32 s47, s7, 7
s_add_u32 s41, s41, s47
s_lshl_b32 s47, s7, 13"""))
            add(setup_tr_gu(KVGU_TR))
    add(L(f"""s_lshl_b32 s7, s4, 1
s_lshr_b32 s45, s3, 1
s_add_u32 s7, s7, s45
s_mul_i32 s45, s7, {74*4096}
s_and_b32 s7, s3, 1
s_lshl_b32 s7, s7, 11
s_add_u32 s45, s45, s7
v_bfe_u32 v40, v1, 4, 1
v_lshlrev_b32 v40, 10, v40
v_lshrrev_b32 v41, 5, v1
v_lshl_add_u32 v40, v41, 8, v40
v_and_b32 v41, 15, v1
v_lshl_add_u32 v28, v41, 4, v40
v_add_u32 v29, 4096, v28
s_mov_b32 s50, 0xbfb8aa3b
s_mov_b32 s51, 0x3fb8aa3b
s_mov_b32 s52, 0xffff0000
s_mov_b32 s53, 0x358637bd"""))
    if tag in ('GU3', 'GU2'):
        add(L(f"""s_add_u32 s46, s46, s45
s_add_u32 s47, s46, 8192
s_add_u32 s48, s48, s45"""))
        if tag == 'GU2': add(L("s_mov_b32 s47, s48"))
    elif tag == 'KVGU':
        add(L("s_add_u32 s47, s47, s45"))
    if OPT['fused']: add(ph2_setup())
    U0 = L("""v_and_b32 v56, 31, v1
v_lshrrev_b32 v57, 5, v1
v_bfe_u32 v58, v1, 1, 3
v_lshlrev_b32 v59, 7, v56
v_add_u32 v59, s6, v59
s_mov_b32 s49, 0x3f803f80""")
    for q in range(4):
        U0 += L(f"v_add_u32 v60, {2*q}, v57\nv_xor_b32 v60, v60, v58\nv_lshl_add_u32 v{34+q}, v60, 4, v59")
    for j in range(8): U0.append(I(f"v_mov_b32 v{48+j}, 0"))
    U = [[i] for i in U0] + U
    def fill(n):
        o = []
        while U and n > 0:
            u = U.pop(0); o += u; n -= len(u)
        return o
    dl = {}
    P += fill(40)
    prev = None
    wq = []
    for S in range(5):
        bs = dma_bundles(groups, S); dl[S] = bs[-1].ins[-1]; wq.append((S, bs))
    for c in range(11):
        cur = None
        vq = []
        if OPT['pstamp'] and c == 0 and tag != 'GU2': P += stamp(11)
        if c < 10:
            P.append(Wait(vm=xl[4 * c + 3][-1]))
            if OPT['pstamp'] and c in (0, 3, 6, 9): P += stamp(12 + c // 3)
            cur = []
            for q in range(4):
                k = 4 * c + q
                r = I(f"ds_read_b128 v[{XR+4*k}:{XR+4*k+3}], v{34+q} offset:{4096*c}"); P.append(r); cur.append(r)
            if sjq and c + XA >= 6:
                for st in sjq: P += st
                sjq = []
            if c + XA < 10: vq = [xl[4 * (c + XA) + rg] for rg in range(4)]
        if c + XA >= 10:
            P += fill(1000)
            if wq and wq[0][0] < OPT['wpro'] and c >= OPT['wc0'] + 2 * wq[0][0]:
                vq += [b.ins for b in wq.pop(0)[1]]
        dots = []
        if prev is not None:
            pc = c - 1
            for j in range(16):
                x = XR + 16 * pc + j
                dots.append(I(f"v_dot2_f32_bf16 v{48+(j&3)}, v{x}, s49, v{48+(j&3)}"))
                dots.append(I(f"v_dot2_f32_bf16 v{52+(j&3)}, v{x}, v{x}, v{52+(j&3)}"))
            P.append(Wait(lg=prev[-1]))
        n = max(1, len(vq))
        for j in range(n):
            if j < len(vq): P += vq[j]
            m = (len(dots) + (n - j) - 1) // (n - j)
            P += dots[:m]; dots = dots[m:]
            P += fill(6)
        prev = cur
    assert not U
    P += stamp(0)
    P += L("""s_nop 2
v_add_f32 v48, v48, v49
v_add_f32 v50, v50, v51
v_add_f32 v52, v52, v53
v_add_f32 v54, v54, v55
v_add_f32 v48, v48, v50
v_add_f32 v52, v52, v54
v_mov_b32 v49, v48
v_mov_b32 v53, v52
v_permlane32_swap_b32 v48, v49
v_permlane32_swap_b32 v52, v53
v_add_f32 v48, v48, v49
v_add_f32 v52, v52, v53
v_mul_f32 v48, 0x3acccccd, v48
v_mul_f32 v52, 0x3acccccd, v52
v_fma_f32 v52, -v48, v48, v52
v_max_f32 v52, 0, v52
v_cvt_pk_bf16_f32 v50, v48, v52
v_and_b32 v52, s52, v50
v_lshlrev_b32 v48, 16, v50
v_add_f32 v52, 0x3727c5ac, v52
v_cvt_pk_bf16_f32 v52, v52, v52
v_and_b32 v52, s52, v52
v_sqrt_f32 v52, v52
v_cvt_pk_bf16_f32 v52, v52, v52
v_and_b32 v52, s52, v52
v_rcp_f32 v32, v52
v_mul_f32 v33, v48, v32
v_sub_f32 v33, 0, v33""")
    if tag == 'GU2':
        P += poll(f"K1_{tag}_N", [nl], [], nonce=True)
        if OPT['fused']: P += L(f"s_lshl_b32 s7, s86, 2\ns_add_u32 s7, s7, {FL_W}") + [Wait(vm=sjlast), flag_store(7)]
    P.append(Wait(vm=dl[0])); P.append(I("s_barrier"))
    nG = len(groups)
    steps = [(40 * gi + k, t) for gi, G in enumerate(groups) for k in range(40) for t in range(G.T)]
    D = OPT['dist']
    rdtok = {}
    rp = 0
    def issue_reads(upto, maxS):
        nonlocal rp
        o = []
        while rp < min(upto, len(steps)) and steps[rp][0] // 4 <= maxS:
            rr = tr_reads(groups, steps[rp][0], rp, steps[rp][1]); o += rr; rdtok[rp] = rr[-1]; rp += 1
        return o
    P += issue_reads(D, 0)
    NS = []
    for k in range(40): NS += norm_ins(k)
    P += NS[:24]; NS = NS[24:]
    P += stamp(1)
    dmaq = []
    PQ = []; nS = 10 * nG; wst = WState()
    for _, bs in wq: dmaq += bs
    okS = 0
    si = 0
    for gi, G in enumerate(groups):
        F = []
        if gi == 0:
            pass
        else:
            Pv = groups[gi - 1]
            if Pv.typ == 'GU':
                ge = gu_epilogue(Pv.acc, 46 + gi - 1)
                F += B1(ge)
                if OPT['fused'] and gi == nG - 1:
                    F.append(Bundle([], cost=OPT['efw']))
                    F.append(Bundle(L(f"s_add_u32 s7, s96, {FL_E - FL_H}") + [Wait(vm=ge[-1]), flag_store(7)]))
            else:
                ke = kv_epilogue(Pv.acc, tag, pk=bool(OPT['kvx']))
                if OPT['kvx']:
                    while not ke[0].sync: P += ke.pop(0).ins
                    P += ke.pop(0).ins; P.append(I("s_barrier"))
                F += ke
        if OPT['fused'] and gi == 1:
            wf = [I("buffer_load_dwordx4 v[80:83], v27, s[24:27], s57 offen sc1"), I("buffer_load_dword v84, v85, s[24:27], s57 offen offset:1024 sc1")]
            P += L(f"s_mov_b32 s57, {FL_W}\nv_lshlrev_b32 v27, 4, v1\nv_lshlrev_b32 v85, 2, v1\nv_add_u32 v25, 4096, v27") + wf
            PQ = list(range(N_EARLY))
        xo = [None]
        def avail(f):
            kind, loc = WLOC[f]
            if kind == 'a':
                rs = {f"a{r}" for r in range(loc, loc + 4)}
                for g2 in groups[gi:]:
                    if g2.acc <= loc < g2.acc + 16 * g2.T: return False
                return not any(rs & (i.rd | i.wr) for b in F for i in b.ins)
            if dmaq: return False
            if loc < 25600: return okS >= nS - 4 + loc // SLOT
            if not kv: return True
            if tag == 'KVQ' and loc < 33792: return False
            gth = {f"a{r}" for r in range(64)}
            return xch_free(lambda: not any(gth & i.wr for b in F for i in b.ins), xo, lambda: okS)
        cap = OPT['cap'] if Grp_prev_typ(groups, gi) != 'KV' else (OPT['bud_kvq'] if tag == 'KVQ' else OPT['bud_kvgu'])
        if OPT['nofill'] and tag == 'GU3': F = []
        debt = 0
        for k in range(40):
            kk = 40 * gi + k
            S, q = divmod(kk, 4)
            for t in range(G.T):
                a = WFR + (si % NFR) * 4; acc = G.acc + 16 * t; x = XR + 4 * k
                used = 0
                if si % 2 == 0 or (si + 0) not in rdtok:
                    w = min(si + 1, rp - 1)
                    P.append(Wait(lg=rdtok[w]))
                else:
                    P.append(Wait(lg=rdtok[si]))
                c = f"a[{acc}:{acc+15}]" if k else "0"
                if G.typ == 'KV': P.append(I(f"v_mfma_f32_32x32x16_bf16 a[{acc}:{acc+15}], v[{x}:{x+3}], a[{a}:{a+3}], {c}"))
                else: P.append(I(f"v_mfma_f32_32x32x16_bf16 a[{acc}:{acc+15}], a[{a}:{a+3}], v[{x}:{x+3}], {c}"))
                si += 1
                if gi == 0 and t == 0 and k == OPT['nk0'] and tag != 'GU2':
                    nl = I("buffer_load_dword v26, v27, s[28:31], 0 offen sc1"); P.append(nl)
                if gi == 0 and t == 0 and k == OPT['nk1'] and tag != 'GU2':
                    P += poll(f"K1_{tag}_N", [nl], [], nonce=True)
                    if OPT['fused'] and tag in ('GU2', 'KVGU'):
                        P += L(f"s_lshl_b32 s7, s86, 2\ns_add_u32 s7, s7, {FL_W + (0 if tag == 'GU2' else 256)}") + [Wait(vm=sjlast), flag_store(7)]
                justbar = False
                if rp < len(steps) and steps[rp][0] // 4 > okS and si + D - rp > OPT['barpos']:
                    if F and F[0].sync: P += F.pop(0).ins
                    P.append(Wait(vm=dl[okS + 1], lg='all')); P.append(I("s_barrier")); used += 2
                    okS += 1; justbar = True
                    bs = dma_bundles(groups, okS + 4)
                    if bs: dl[okS + 4] = bs[-1].ins[-1]
                    dmaq += bs
                rr = issue_reads(min(si + D, rp + 2), okS); P += rr; used += len(rr)
                if NS:
                    n = 20 // G.T
                    P += NS[:n]; used += min(n, len(NS)); NS = NS[n:]
                if dmaq and not justbar:
                    b = dmaq.pop(0); P += b.ins; used += slots(b.ins); wst.m0 = None
                if OPT['fused'] and gi >= 1:
                    if gi == 1 and k == OPT['wpollk'] and t == 0: P += poll(f"K1_{tag}_W", wf, [80, 81, 82, 83, 84]); used += 12
                    if (gi > 1 or k > OPT['wpollk']) and t in PR[OPT['pr_' + tag]]:
                        c2 = [f for f in PQ if avail(f)]
                        if c2:
                            g = w_load(c2[0], wst); PQ.remove(c2[0]); P += g; used += slots(g)
                used += debt; debt = 0
                while F and not F[0].sync and used < cap:
                    b = F[0]
                    if not b.ins:
                        if b.cost > 0: b.cost -= 32; break
                        F.pop(0); continue
                    n = slots(b.ins)
                    if used + n > cap and n <= 2: break
                    F.pop(0); P += b.ins; used += n
                if used > cap: debt = min(used - cap, 6)
        if F: print(f"  [{tag}] group {gi}: {len(F)} filler bundles left over", file=sys.stderr)
        for b in F:
            P += b.ins
            if b.sync: P.append(I("s_barrier"))
        P += stamp(2 + gi)
    assert not dmaq
    Lg = groups[-1]
    tail = gu_epilogue(Lg.acc, 46 + nG - 1, pk=True) if Lg.typ == 'GU' else q_tail(Lg.acc, tag)
    if not OPT['fused']:
        P += tail
        P += stamp(6) + stamp_out()
        P.append(I("s_endpgm"))
        return P
    lastst = None
    P += flag_addr(87, 'E') + L(f"s_add_u32 s56, s97, {FL_E - FL_H}")
    fe = I("buffer_load_dword v86, v87, s[24:27], s56 offen sc1"); P.append(fe)
    for i in tail:
        P.append(i)
        if i.kind == 'vmem' and 'store' in i.mn: lastst = i
    P += stamp(6)
    P.append(I("s_barrier"))
    wst.m0 = None
    print(f"  [{tag}] {len(PQ)} early W fragments left for the tail", file=sys.stderr)
    n = 0
    if OPT['cflag'] == 0: P += [Wait(vm=lastst), flag_store(96)]
    for f in PQ:
        P += w_load(f, wst); n += 1
        if n == OPT['cflag']: P += [Wait(vm=lastst), flag_store(96)]
    if n < OPT['cflag']: P += [Wait(vm=lastst), flag_store(96)]
    P += poll(f"K1_{tag}_E", [fe], [86])
    P.append(I("s_branch PH2"))
    return P

def safe_after(tail, n):
    inpoll = False
    for i in tail[:n + 1]:
        if i.label and i.mn.endswith('_chk:'): inpoll = True
        if i.label and i.mn.endswith('_ok:'): inpoll = False
    if inpoll: return False
    if isinstance(tail[n], Wait): return False
    if n + 1 < len(tail) and tail[n + 1].mn.startswith(('s_addc', 's_cselect', 's_cbranch')): return False
    return True

def setup_tr_gu_into(base):
    o = []
    for i in setup_tr_gu(base):
        t = i.text
        for a, b in ((40, 59), (41, 60), (42, 61), (43, 62), (44, 63), (45, 64), (46, 65)):
            t = re.sub(rf"\bv{a}\b", f"v{b}", t)
        o.append(I(t))
    return o

def _locs():
    l = [('a', 160 + 4 * i) for i in range(16)]
    l += [('l', 33792 + 1024 * i) for i in range(7)]
    l += [('a', 64 + 4 * i) for i in range(4)]
    l += [('l', 25600 + 1024 * i) for i in range(8)]
    l += [('a', 4 * i) for i in range(15)]
    l += [('l', SLOT * j + 1024 * i) for j in range(4) for i in range(5)]
    n_early = len(l)
    l += [('a', WFR + 4 * i) for i in range(8)]
    l += [('a', 80 + 4 * i) for i in range(17)]
    assert len(l) == 95 and n_early == 70
    return l, n_early
WLOC, N_EARLY = _locs()

class WState:
    def __init__(self): self.ks = None; self.m0 = None

def step_off(dst, j, stride, r6, r8, r14):
    if j < 6: return L(f"s_mov_b32 s{dst}, {j*stride}")
    base, reg = (6, r6) if j < 8 else (8, r8) if j < 14 else (14, r14)
    return L(f"s_add_u32 s{dst}, s{reg}, {(j-base)*stride}")

def w_load(f, st):
    ks, nt = divmod(f, 5)
    kind, loc = WLOC[f]
    pre = []
    v = 27 if nt < 4 else 25
    imm = 1024 * (nt & 3)
    if kind == 'l' and st.m0 != loc - imm:
        assert loc - imm >= 0
        pre += L(f"s_add_u32 m0, s6, {loc - imm}"); st.m0 = loc - imm
    if st.ks != ks: pre += step_off(65, ks, 40960, 87, 88, 89); st.ks = ks
    if kind == 'a': return pre + L(f"buffer_load_dwordx4 a[{loc}:{loc+3}], v{v}, s[32:35], s65 offen offset:{imm} sc1")
    return pre + L(f"buffer_load_dwordx4 v{v}, s[32:35], s65 offen offset:{imm} sc1 lds")

def ph2_setup():
    return L(f"""s_and_b32 s7, s5, 7
s_mul_i32 s32, s3, {14*8}
s_add_u32 s7, s7, s32
s_mul_i32 s7, s7, 5120
s_sub_u32 s34, {74*40960}, s7
s_add_u32 s7, s7, {WF_OFF}""") + [raw("s_add_u32 s32, s82, s7\ns_addc_u32 s33, s83, 0")] + L(f"""s_mov_b32 s35, 0x20000
s_mov_b32 s87, {6*40960}
s_mov_b32 s88, {8*40960}
s_cmp_eq_u32 s3, 3
s_cselect_b32 s88, s87, s88
s_cselect_b32 s87, {HUGE}, s87
s_mul_i32 s89, s3, {9*40960}
s_sub_u32 s89, {54*40960}, s89
s_lshl_b32 s96, s4, 8
s_lshr_b32 s7, s3, 1
s_lshl_b32 s7, s7, 7
s_add_u32 s96, s96, s7
s_lshl_b32 s7, s5, 3
s_add_u32 s96, s96, s7
s_and_b32 s7, s3, 1
s_lshl_b32 s7, s7, 2
s_add_u32 s96, s96, s7
s_add_u32 s96, s96, {FL_H}
s_lshl_b32 s97, s4, 8
s_lshr_b32 s7, s5, 3
s_lshl_b32 s7, s7, 7
s_add_u32 s97, s97, s7
s_add_u32 s97, s97, {FL_H}""")

def flag_addr(dst, which):
    P = L(f"v_and_b32 v{dst}, 1, v1\nv_lshlrev_b32 v{dst}, 2, v{dst}")
    if which == 'O': return P + L(f"s_lshl_b32 s7, s3, 3\nv_add_u32 v{dst}, s7, v{dst}")
    P += L(f"v_and_b32 v86, 2, v1\nv_lshl_add_u32 v{dst}, v86, 2, v{dst}\ns_lshl_b32 s7, s3, 4\ns_add_u32 s7, s7, 64\nv_add_u32 v{dst}, s7, v{dst}")
    if which == 'L':
        P += L(f"v_and_b32 v86, 1, v1\nv_lshlrev_b32 v86, 2, v86\ns_lshl_b32 s7, s3, 3\ns_add_u32 s7, s7, 32\nv_add_u32 v86, s7, v86\nv_cmp_lt_u32 vcc, 3, v1\nv_cndmask_b32 v{dst}, v{dst}, v86, vcc")
    return P

def ph2():
    ACC = XR; HB = XR + 80; NH = 4; WT = 40
    GR = [240 + j for j in range(16)] + [30 + j for j in range(8)]
    P = [I("PH2:")]
    P += L(f"""s_lshr_b32 s7, s5, 3
s_lshl_b32 s40, s4, 1
s_add_u32 s40, s40, s7
s_mul_i32 s41, s40, 74
s_mul_i32 s42, s3, 14
s_add_u32 s41, s41, s42
s_lshl_b32 s41, s41, 12
s_add_u32 s41, s41, {HF_OFF}
s_add_u32 s36, s82, s41
s_addc_u32 s37, s83, 0
s_sub_u32 s38, 74, s42
s_lshl_b32 s38, s38, 12
s_mov_b32 s39, 0x20000
s_mov_b32 s42, {6*4096}
s_mov_b32 s43, {8*4096}
s_cmp_eq_u32 s3, 3
s_cselect_b32 s43, s42, s43
s_cselect_b32 s42, {HUGE}, s42
s_mul_i32 s44, s3, {9*4096}
s_sub_u32 s44, {54*4096}, s44""")
    hl = {}
    def hbuf(j): return HB + 16 * (j % NH) if j < 18 else WT
    def hloads(j):
        r = hbuf(j)
        o = step_off(41, j, 4096, 42, 43, 44)
        ls = [I(f"buffer_load_dwordx4 v[{r+4*m}:{r+4*m+3}], v27, s[36:39], s41 offen offset:{1024*m} sc1") for m in range(4)]
        hl[j] = ls
        return o, ls
    for j in range(NH):
        o, ls = hloads(j); P += o + ls
    P += L("s_load_dwordx2 s[48:49], s[0:1], 56")
    P += flag_addr(2, 'L') + flag_addr(3, 'O')
    P += L("s_and_b32 s7, s5, 7\ns_mul_i32 s47, s40, 81920\ns_mul_i32 s7, s7, 160\ns_add_u32 s47, s47, s7")
    for i in range(3):
        P += L(f"""v_add_u32 v4, {256*i}, v0
v_mul_u32_u24 v5, 6554, v4
v_lshrrev_b32 v5, 16, v5
v_mul_u32_u24 v6, 10, v5
v_sub_u32 v6, v4, v6
v_mul_u32_u24 v7, 1280, v5
v_lshl_add_u32 v{10+i}, v6, 4, v7
v_mul_u32_u24 v7, 336, v5
v_lshl_add_u32 v{13+i}, v6, 5, v7
v_add_u32 v{16+i}, 81920, v{13+i}""")
    P += L(f"v_mov_b32 v7, {HUGE}\nv_cmp_gt_u32 vcc, 128, v0\nv_cndmask_b32 v12, v7, v12, vcc")
    P += L("""v_and_b32 v4, 15, v1
v_mul_u32_u24 v4, 336, v4
v_lshrrev_b32 v5, 4, v1
v_lshl_add_u32 v4, v5, 4, v4
v_add_u32 v9, s6, v4
v_add_u32 v8, s6, v27
s_waitcnt lgkmcnt(0)""")
    P += srd(12, 48, 49, 2621440)
    st = WState()
    wl = {}; wr = {}
    lateq = list(range(N_EARLY, 95))
    def wreads(j):
        rs = []
        for n in range(5):
            f = 5 * j + n
            kind, loc = WLOC[f]
            if kind != 'l': continue
            t = WT + 20 * (j & 1) + 4 * n
            r = I(f"ds_read_b128 v[{t}:{t+3}], v8 offset:{loc}"); wr[f] = r
            rs.append([r])
        return rs
    def step(j, side, nxt):
        o = []
        r = hbuf(j)
        for m in range(4):
            o.append(Wait(vm=hl[j][m]))
            for n in range(5):
                f = 5 * j + n
                kind, loc = WLOC[f]
                a = ACC + (n * 4 + m) * 4
                if kind == 'a':
                    w = f"a[{loc}:{loc+3}]"
                    if m == 0 and f in wl: o.append(Wait(vm=wl[f]))
                else:
                    t = WT + 20 * (j & 1) + 4 * n; w = f"v[{t}:{t+3}]"
                    if m == 0: o.append(Wait(lg=wr[f]))
                c = f"v[{a}:{a+3}]" if j not in (0, 14) else "0"
                o.append(I(f"v_mfma_f32_16x16x32_bf16 v[{a}:{a+3}], {w}, v[{r+4*m}:{r+4*m+3}], {c}"))
                if side and n in (1, 3): o += side.pop(0)
            if nxt:
                if m == 0: o += nxt[0]
                o.append(nxt[1][m])
        for g in side: o += g
        return o
    fl = I("buffer_load_dword v4, v2, s[24:27], s97 offen sc1")
    fo = I("buffer_load_dword v5, v3, s[24:27], s97 offen sc1")
    xl = [I(f"buffer_load_dwordx4 v[{80+4*i}:{83+4*i}], v{10+i}, s[8:11], s47 offen") for i in range(3)]
    P.append(Wait(vm=hl[0][0]))
    P += stamp(5)
    for j in range(14):
        side = []
        if j == OPT['lfl']: side.append([fl])
        if j == 10: side += [[x] for x in xl]
        if j == OPT['ofl']: side.append([fo])
        if j >= OPT['lw0']:
            for f in lateq[:OPT['lrate']]:
                g = w_load(f, st); side.append(g); wl[f] = g[-1]
            lateq = lateq[OPT['lrate']:]
        if j + 1 < 14: side = wreads(j + 1) + side
        if j == 8 - NH: P += poll("PH2_L", [fl], [4]) + (stamp(12) if not OPT['kvfine'] else [])
        nxt = hloads(j + NH) if j + NH < 14 else None
        P += step(j, side, nxt)
    assert not lateq
    P += stamp(7)
    def write_partials():
        o = [I("s_nop 7")]
        for n in range(5):
            for m in range(4):
                a = ACC + (n * 4 + m) * 4
                o.append(I(f"ds_write_b128 v9, v[{a}:{a+3}] offset:{m*5376 + n*64}"))
        return o
    def read_partials(rd):
        o = []
        for i in range(3):
            for sw in range(4):
                for hlf in range(2):
                    d = ACC + 32 * i + 8 * sw + 4 * hlf if i < 2 else (ACC + 64 + 8 * sw + 4 * hlf if sw < 2 else 60 + 8 * (sw - 2) + 4 * hlf)
                    r = I(f"ds_read_b128 v[{d}:{d+3}], v{(13 if sw < 2 else 16)+i} offset:{(sw&1)*40960 + 16*hlf}"); o.append(r); rd[(i, sw)] = r
        return o
    def src(i, sw): return ACC + 32 * i + 8 * sw if (i < 2 or sw < 2) else 60 + 8 * (sw - 2)
    def sum4(i):
        b = src(i, 0); o = []
        for j in range(0, 8, 2): o.append(I(f"v_pk_add_f32 v[{b+j}:{b+j+1}], v[{b+j}:{b+j+1}], v[{src(i,1)+j}:{src(i,1)+j+1}]"))
        for j in range(0, 8, 2): o.append(I(f"v_pk_add_f32 v[{src(i,2)+j}:{src(i,2)+j+1}], v[{src(i,2)+j}:{src(i,2)+j+1}], v[{src(i,3)+j}:{src(i,3)+j+1}]"))
        for j in range(0, 8, 2): o.append(I(f"v_pk_add_f32 v[{b+j}:{b+j+1}], v[{b+j}:{b+j+1}], v[{src(i,2)+j}:{src(i,2)+j+1}]"))
        return o
    P += write_partials()
    P += poll("PH2_O", [fo], [5])
    P += (stamp(11) if not OPT['kvfine'] else [])
    for j in range(14, 19):
        o, ls = hloads(j); P += o + ls
    P += L("s_waitcnt lgkmcnt(0)\ns_barrier")
    rd = {}
    P += read_partials(rd)
    for i in range(3):
        b = src(i, 0); e = src(i, 1)
        P.append(Wait(lg=rd[(i, 3)]))
        P += sum4(i)
        for j in range(0, 8, 2): P.append(I(f"v_pk_mul_f32 v[{e+j}:{e+j+1}], v[{b+j}:{b+j+1}], s[50:51] op_sel_hi:[1,0]"))
        for j in range(8): P.append(I(f"v_exp_f32 v{e+j}, v{e+j}"))
        for j in range(0, 8, 2): P.append(I(f"v_pk_add_f32 v[{e+j}:{e+j+1}], v[{e+j}:{e+j+1}], 1.0 op_sel_hi:[1,0]"))
        for j in range(8): P.append(I(f"v_rcp_f32 v{e+j}, v{e+j}"))
        for j in range(0, 8, 2): P.append(I(f"v_pk_mul_f32 v[{GR[8*i+j]}:{GR[8*i+j]+1}], v[{b+j}:{b+j+1}], v[{e+j}:{e+j+1}]"))
    P += (stamp(14) if not OPT['kvfine'] else [])
    for j in range(14, 19): P += step(j, [], None)
    P += (stamp(15) if not OPT['kvfine'] else [])
    P.append(I("s_barrier"))
    P += write_partials()
    P += L("s_waitcnt lgkmcnt(0)\ns_barrier")
    rd = {}
    P += read_partials(rd)
    for i in range(3):
        b = src(i, 0); e = src(i, 1)
        P.append(Wait(lg=rd[(i, 3)]))
        P += sum4(i)
        for j in range(8):
            x = 80 + 4 * i + (j >> 1)
            P.append(I(f"v_and_b32 v{e+j}, s52, v{x}" if j & 1 else f"v_lshlrev_b32 v{e+j}, 16, v{x}"))
        for j in range(0, 8, 2): P.append(I(f"v_pk_fma_f32 v[{b+j}:{b+j+1}], v[{b+j}:{b+j+1}], v[{GR[8*i+j]}:{GR[8*i+j]+1}], v[{e+j}:{e+j+1}]"))
        for j in range(4): P.append(I(f"v_cvt_pk_bf16_f32 v{e+j}, v{b+2*j}, v{b+2*j+1}"))
        P.append(I(f"buffer_store_dwordx4 v[{e}:{e+3}], v{10+i}, s[12:15], s47 offen"))
    P += stamp(13)
    P += stamp_out()
    P.append(I("s_endpgm"))
    return P

def stamp_out():
    if not OPT['stamp']: return []
    return L(f"""s_memrealtime s[94:95]
s_waitcnt lgkmcnt(0)
v_writelane_b32 v21, s90, 8
v_writelane_b32 v21, s94, 9
v_writelane_b32 v21, s5, 10
s_lshl_b32 s7, s2, 2
s_add_u32 s7, s7, s3
s_lshl_b32 s7, s7, 6
s_add_u32 s7, s7, {ST_OFF}
v_lshlrev_b32 v40, 2, v1
v_mov_b32 v41, {HUGE}
v_cmp_gt_u32 vcc, 16, v1
v_cndmask_b32 v40, v41, v40, vcc
buffer_store_dword v21, v40, s[24:27], s7 offen""")

def k2():
    P = L("s_cmp_ge_u32 s2, 256\ns_cbranch_scc1 K2_END")
    if OPT['stamp']: P += L("s_memrealtime s[90:91]\ns_memtime s[92:93]")
    P += L("""s_load_dwordx2 s[4:5], s[0:1], 0
s_load_dwordx2 s[6:7], s[0:1], 56
s_load_dwordx2 s[24:25], s[0:1], 72
v_lshrrev_b32 v1, 6, v0
s_and_b32 s26, s2, 7
s_lshr_b32 s27, s2, 3
v_readfirstlane_b32 s3, v1
v_and_b32 v1, 63, v0
s_and_b32 s28, s26, 3
s_lshl_b32 s28, s28, 3
s_and_b32 s29, s27, 7
s_add_u32 s28, s28, s29
s_lshr_b32 s29, s26, 2
s_lshl_b32 s29, s29, 2
s_lshr_b32 s27, s27, 3
s_add_u32 s29, s29, s27
s_mul_i32 s30, s3, 18
s_cmp_eq_u32 s3, 3
s_cselect_b32 s31, 20, 18
s_cselect_b32 s36, 7, 6
s_mul_i32 s32, s28, 74
s_add_u32 s32, s32, s30
s_lshl_b32 s32, s32, 12
s_mul_i32 s33, s30, 8
s_add_u32 s33, s33, s29
s_mul_i32 s33, s33, 5120""")
    P += L(f"s_add_u32 s32, s32, {HF_OFF}\ns_add_u32 s33, s33, {WF_OFF}")
    P += L("""v_lshlrev_b32 v2, 4, v1
v_add_u32 v3, 4096, v2
s_waitcnt lgkmcnt(0)
s_add_u32 s8, s24, s32
s_addc_u32 s9, s25, 0
s_lshl_b32 s10, s31, 12
s_mov_b32 s11, 0x20000
s_add_u32 s12, s24, s33
s_addc_u32 s13, s25, 0
s_mul_i32 s14, s31, 40960
s_sub_u32 s14, s14, 35840
s_mov_b32 s15, 0x20000
s_mov_b32 s34, 0
s_mov_b32 s35, 0""")
    P += srd(16, 4, 5, 2621440) + srd(20, 6, 7, 2621440)
    SB = 40; ACC = SB + 108
    def loads(st):
        r = SB + 36 * st
        hl = [I(f"buffer_load_dwordx4 v[{r+4*i}:{r+4*i+3}], v2, s[8:11], s34 offen offset:{1024*i}") for i in range(4)]
        wl = [I(f"buffer_load_dwordx4 v[{r+16+4*i}:{r+19+4*i}], v2, s[12:15], s35 offen offset:{1024*i}") for i in range(4)]
        wl.append(I(f"buffer_load_dwordx4 v[{r+32}:{r+35}], v3, s[12:15], s35 offen"))
        return hl, wl
    adv = lambda: L("s_add_u32 s34, s34, 4096\ns_add_u32 s35, s35, 40960")
    for st in range(3):
        hl, wl = loads(st); P += wl + hl + adv()
    P += L("s_mul_i32 s37, s28, 81920\ns_mul_i32 s38, s29, 160\ns_add_u32 s37, s37, s38")
    for i in range(3):
        P += L(f"""v_add_u32 v4, {256*i}, v0
v_mul_u32_u24 v5, 6554, v4
v_lshrrev_b32 v5, 16, v5
v_mul_u32_u24 v6, 10, v5
v_sub_u32 v6, v4, v6
v_mul_u32_u24 v7, 1280, v5
v_lshl_add_u32 v{10+i}, v6, 4, v7
v_mul_u32_u24 v7, 336, v5
v_lshl_add_u32 v{13+i}, v6, 5, v7""")
    P += L(f"v_mov_b32 v7, {HUGE}\nv_cmp_gt_u32 vcc, 128, v0\nv_cndmask_b32 v12, v7, v12, vcc")
    for i in range(3):
        P.append(I(f"buffer_load_dwordx4 v[{16+4*i}:{19+4*i}], v{10+i}, s[16:19], s37 offen"))
    for i in range(80): P.append(I(f"v_mov_b32 v{ACC+i}, 0"))
    P += L("""v_and_b32 v4, 15, v1
v_mul_u32_u24 v4, 336, v4
v_lshrrev_b32 v5, 4, v1
v_lshl_add_u32 v4, v5, 4, v4
s_mul_i32 s38, s3, 21504
v_add_u32 v9, s38, v4
s_mov_b32 s50, 0xbfb8aa3b
s_mov_b32 s52, 0xffff0000
s_waitcnt vmcnt(21)""")
    P.append(I("K2_LOOP:"))
    for st in range(3):
        r = SB + 36 * st
        hl, wl = loads(st)
        P.append(I("s_waitcnt vmcnt(18)"))
        for n in range(5):
            for m in range(4):
                a = ACC + (n * 4 + m) * 4
                P.append(I(f"v_mfma_f32_16x16x32_bf16 v[{a}:{a+3}], v[{r+16+4*n}:{r+19+4*n}], v[{r+4*m}:{r+4*m+3}], v[{a}:{a+3}]"))
                if n == 4: P.append(hl[m])
            if n < 4: P.append(wl[n])
        P.append(wl[4])
        P += adv()
    P += L("s_sub_u32 s36, s36, 1\ns_cmp_lg_u32 s36, 0\ns_cbranch_scc1 K2_LOOP")
    if OPT['stamp']: P += L("s_memtime s[94:95]")
    P.append(I("s_nop 7"))
    for n in range(5):
        for m in range(4):
            a = ACC + (n * 4 + m) * 4
            P.append(I(f"ds_write_b128 v9, v[{a}:{a+3}] offset:{m*5376 + n*64}"))
    P += L("s_waitcnt lgkmcnt(0)\ns_barrier")
    rd = {}
    for i in range(3):
        for s in range(4):
            for hlf in range(2):
                d = SB + 32 * i + 8 * s + 4 * hlf
                r = I(f"ds_read_b128 v[{d}:{d+3}], v{13+i} offset:{s*21504 + 16*hlf}"); P.append(r); rd[(i, s)] = r
    P.append(I("s_waitcnt vmcnt(0)"))
    for i in range(3):
        b = SB + 32 * i; T = 140
        P.append(Wait(lg=rd[(i, 3)]))
        for j in range(8): P.append(I(f"v_add_f32 v{b+j}, v{b+j}, v{b+8+j}"))
        for j in range(8): P.append(I(f"v_add_f32 v{b+j}, v{b+j}, v{b+16+j}"))
        for j in range(8): P.append(I(f"v_mul_f32 v{b+8+j}, s50, v{b+j}"))
        for j in range(8):
            P.append(I(f"v_exp_f32 v{b+8+j}, v{b+8+j}"))
            x = 16 + 4 * i + (j >> 1)
            P.append(I(f"v_and_b32 v{b+16+j}, s52, v{x}" if j & 1 else f"v_lshlrev_b32 v{b+16+j}, 16, v{x}"))
        for j in range(8): P.append(I(f"v_add_f32 v{b+8+j}, 1.0, v{b+8+j}"))
        for j in range(8):
            P.append(I(f"v_rcp_f32 v{b+8+j}, v{b+8+j}"))
            P.append(I(f"v_mul_f32 v{b+j}, v{b+j}, v{b+24+j}"))
        for j in range(8): P.append(I(f"v_fma_f32 v{b+j}, v{b+j}, v{b+8+j}, v{b+16+j}"))
        for j in range(4): P.append(I(f"v_cvt_pk_bf16_f32 v{b+24+j}, v{b+2*j}, v{b+2*j+1}"))
        P.append(I(f"buffer_store_dwordx4 v[{b+24}:{b+27}], v{10+i}, s[20:23], s37 offen"))
    if OPT['stamp']:
        P += L(f"""s_memrealtime s[96:97]
s_memtime s[98:99]
s_waitcnt lgkmcnt(0)
s_sub_u32 s94, s94, s92
s_sub_u32 s98, s98, s92
v_mov_b32 v4, s90
v_mov_b32 v5, s96
v_mov_b32 v6, s94
v_mov_b32 v7, s98
s_lshl_b32 s38, s2, 2
s_add_u32 s38, s38, s3
s_lshl_b32 s38, s38, 4
s_add_u32 s38, s38, {ST_OFF + 0x20000}
s_mov_b32 s8, s24
s_mov_b32 s9, s25
s_mov_b32 s10, {WS_REC}
v_mov_b32 v8, {HUGE}
v_cmp_eq_u32 vcc, 0, v1
v_cndmask_b32 v8, v8, v1, vcc
buffer_store_dwordx4 v[4:7], v8, s[8:11], s38 offen""")
    P.append(I("K2_END:"))
    P.append(I("s_endpgm"))
    return P

def desc(name, vgpr, accum, sgpr=102):
    return f""".p2align 6
.amdhsa_kernel {name}
  .amdhsa_next_free_vgpr {vgpr}
  .amdhsa_next_free_sgpr {sgpr}
  .amdhsa_accum_offset {accum}
  .amdhsa_group_segment_fixed_size 0
  .amdhsa_kernarg_size 80
  .amdhsa_user_sgpr_count 2
  .amdhsa_user_sgpr_kernarg_segment_ptr 1
  .amdhsa_system_sgpr_workgroup_id_x 1
.end_amdhsa_kernel
"""

def build(path):
    hdr = open('cdna_kernels/' + NAME + '.s.ref').read().split('\n')
    hdr = [l for l in hdr if l.startswith(';') and '@launch' not in l and 'Override launch' not in l and 'grid=ceil' not in l]
    s = "\n".join(hdr) + "\n"
    s += "; @launch kernel=blk_k1_kernel grid=(256,1,1) block=(256,1,1) lds=163840\n"
    if not OPT['fused']: s += "; @launch kernel=blk_k2_kernel grid=(256,1,1) block=(256,1,1) lds=98304\n"
    s += '.amdgcn_target "amdgcn-amd-amdhsa--gfx950"\n.text\n'
    s += ".globl blk_k1_kernel\n.p2align 8\n.type blk_k1_kernel,@function\nblk_k1_kernel:\n"
    s += text_of(resolve(k1_common())) + "\n"
    for tag in ('KVQ', 'KVGU', 'GU2', 'GU3'):
        s += ".p2align 6\n" + text_of(resolve(k1_path(tag))) + "\n"
    if OPT['fused']: s += ".p2align 6\n" + text_of(resolve(ph2())) + "\n"
    s += "K1_END:\n    s_endpgm\n"
    if not OPT['fused']:
        s += ".globl blk_k2_kernel\n.p2align 8\n.type blk_k2_kernel,@function\nblk_k2_kernel:\n"
        s += text_of(resolve(k2())) + "\n"
    s += "    s_nop 0\n" * 2100 if False else ""
    s += ".fill 8448, 4, 0xbf800000\n" if OPT['codepf'] else ""
    s += '.section .rodata,"a"\n' + desc("blk_k1_kernel", 512, 256) + ("" if OPT['fused'] else desc("blk_k2_kernel", 256, 256))
    if OPT['fused']:
        s = s.replace("; @launch kernel=blk_k1_kernel grid", "; @launch grid").replace("blk_k1_kernel", NAME + "_kernel")
    open(path, 'w').write(s)

if __name__ == "__main__":
    out = sys.argv[1] if len(sys.argv) > 1 else 'cdna_kernels/' + NAME + '.s'
    for a in sys.argv[2:]:
        k, v = a.split('='); OPT[k] = int(v)
    build(out)
```
